```python
import torch

def _softmax(x, axis=-1):
    return torch.softmax(x, dim=axis)
def _gelu(x):
    return torch.nn.functional.gelu(x, approximate="tanh")
def _silu(x):
    return torch.nn.functional.silu(x)
def _sigmoid(x):
    return torch.sigmoid(x)
def _layernorm(x, axis=-1, eps=1e-5):
    m = x.mean(dim=axis, keepdim=True)
    v = x.var(dim=axis, keepdim=True, unbiased=False)
    return (x - m) / torch.sqrt(v + eps)
def _scatter_add(tgt, idx, src, axis=0):
    return tgt.clone().index_add_(axis, idx, src)
def _segment_sum(src, seg, n):
    out = torch.zeros((n,) + src.shape[1:], dtype=src.dtype)
    return out.index_add_(0, seg, src)
def _pad(x, pw):
    flat = tuple(v for pair in reversed(pw) for v in pair)
    return torch.nn.functional.pad(x, flat)

kernel_name = 'gated_mix__linear_kernel_hedgehog__sliding_block__prompt'

def setup_inputs():

    _w = (lambda a: (lambda t: t.to(torch.bfloat16) if t.is_floating_point() else t)(torch.as_tensor(a)))
    def _A_setup():
        B, S, D, H = 1, 2048, 640, 32
        Dh = D // H
        return {
            "x": _w((lambda *s: torch.randn(*s, dtype=torch.bfloat16) * 0.05)(B, S, D)),
            "wqkv": _w((lambda *s: torch.randn(*s, dtype=torch.bfloat16) * 1.6)(D, 3 * D)),
            "w_phi": _w((lambda *s: torch.randn(*s, dtype=torch.bfloat16) * 1.6)(H, Dh, Dh) * (Dh ** -0.5)),
            "wo": _w((lambda *s: torch.randn(*s, dtype=torch.bfloat16) * 0.1)(D, D)),
        }
    _A_in = _A_setup()

    def _B_setup():
        B, S, D = 1, 2048, 640
        return {
            "x": _w((lambda *s: torch.randn(*s, dtype=torch.bfloat16) * 0.05)(B, S, D)),
            "wqkv": _w((lambda *s: torch.randn(*s, dtype=torch.bfloat16) * 0.8)(D, 3 * D)),
            "wo": _w((lambda *s: torch.randn(*s, dtype=torch.bfloat16) * 0.05)(D, D)),
        }
    _B_in = _B_setup()

    return {
        "A_x": _A_in["x"],
        "A_wqkv": _A_in["wqkv"],
        "A_w_phi": _A_in["w_phi"],
        "A_wo": _A_in["wo"],
        "B_x": _B_in["x"],
        "B_wqkv": _B_in["wqkv"],
        "B_wo": _B_in["wo"],
        "gate_w": _w((lambda *s: torch.randn(*s, dtype=torch.bfloat16) * 0.05)(640) * 16.0),
    }

def reference(A_x, A_wqkv, A_w_phi, A_wo, B_x, B_wqkv, B_wo, gate_w):
    def _A_ref(x, wqkv, w_phi, wo):
        B, S, D = x.shape
        H = 32; Dh = D // H
        qkv = (lambda x, *d: x.permute(*d))((x @ wqkv).reshape(B, S, 3, H, Dh), 2, 0, 3, 1, 4)
        q, k, v = qkv[0], qkv[1], qkv[2]
        pq = torch.einsum("bhsd,hdf->bhsf", q, w_phi)
        pk = torch.einsum("bhsd,hdf->bhsf", k, w_phi)
        phi_q = torch.concatenate([_softmax(pq, axis=-1), _softmax(-pq, axis=-1)], axis=-1)
        phi_k = torch.concatenate([_softmax(pk, axis=-1), _softmax(-pk, axis=-1)], axis=-1)
        kv = torch.einsum("bhsf,bhsd->bhfd", phi_k, v)
        z  = torch.einsum("bhsf->bhf", phi_k)
        num = torch.einsum("bhqf,bhfd->bhqd", phi_q, kv)
        den = torch.einsum("bhqf,bhf->bhq", phi_q, z)[..., None] + 1e-6
        o = num / den
        return (lambda x, *d: x.permute(*d))(o, 0, 2, 1, 3).reshape(B, S, D) @ wo

    def _B_ref(x, wqkv, wo):
        B, S, D = x.shape
        H = 32; Dh = D // H; W = 256
        qkv = (lambda x, *d: x.permute(*d))((x @ wqkv).reshape(B, S, 3, H, Dh), 2, 0, 3, 1, 4)
        q, k, v = qkv[0], qkv[1], qkv[2]
        scores = torch.einsum("bhqd,bhkd->bhqk", q, k) * (Dh ** -0.5)
        idx = torch.arange(S)
        mask = (idx[:, None] - idx[None, :] >= 0) & (idx[:, None] - idx[None, :] < W)
        scores = torch.where(mask[None, None], scores, -1e9)
        p = _softmax(scores, axis=-1)
        o = torch.einsum("bhqk,bhkd->bhqd", p, v)
        return (lambda x, *d: x.permute(*d))(o, 0, 2, 1, 3).reshape(B, S, D) @ wo

    x = A_x
    g = _sigmoid((x * gate_w).sum(-1, keepdims=True))
    a = _A_ref(x, A_wqkv, A_w_phi, A_wo)
    b = _B_ref(x, B_wqkv, B_wo)
    return g * a + (1 - g) * b
```

```python
import re

class Asm:
    def __init__(self):
        self.lines = []
    def __call__(self, s=""):
        for l in s.split("\n"):
            l = l.strip()
            if l:
                self.lines.append(l)
    def label(self, name):
        self.lines.append(name + ":")
    def text(self):
        out = []
        for l in self.lines:
            if l.endswith(":") or l.startswith("."):
                out.append(l)
            else:
                out.append("    " + l)
        return "\n".join(out) + "\n"

def v(a, n=1):
    return f"v{a}" if n == 1 else f"v[{a}:{a+n-1}]"
def s(a, n=1):
    return f"s{a}" if n == 1 else f"s[{a}:{a+n-1}]"

_reg = re.compile(r"(?<![\w])([vs])(?:(\d+)|\[(\d+):(\d+)\])")
def regs_of(op):
    out = set()
    for m in _reg.finditer(op):
        k = m.group(1)
        if m.group(2) is not None:
            out.add((k, int(m.group(2))))
        else:
            for i in range(int(m.group(3)), int(m.group(4)) + 1):
                out.add((k, i))
    if re.search(r"\bvcc\b", op): out |= {("s", "vcc")}
    if re.search(r"\bexec\b", op): out |= {("s", "exec")}
    if re.search(r"\bm0\b", op): out |= {("s", "m0")}
    return out

TRANS = ("v_exp_", "v_log_", "v_rcp_", "v_rsq_", "v_sqrt_", "v_sin_", "v_cos_")
class I:
    def __init__(self, line):
        self.line = line
        code = line.split(";")[0].strip()
        p = code.split(None, 1)
        self.op = p[0]
        rest = p[1] if len(p) > 1 else ""
        ops = []; depth = 0; cur = ""
        for ch in rest:
            if ch == "[": depth += 1
            if ch == "]": depth -= 1
            if ch == "," and depth == 0:
                ops.append(cur.strip()); cur = ""
            else: cur += ch
        if cur.strip(): ops.append(cur.strip())
        self.ops = ops
        op = self.op
        self.mfma = op.startswith("v_mfma")
        self.valu = op.startswith("v_") and not self.mfma
        self.trans = op.startswith(TRANS)
        self.dot = op.startswith("v_dot")
        self.vmem = op.startswith(("buffer_", "global_", "flat_"))
        self.ds = op.startswith("ds_")
        self.salu = op.startswith("s_")
        self.lds_dma = self.vmem and " lds" in (" " + rest)
        W = set(); R = set()
        o = [regs_of(x) for x in ops]
        if self.mfma:
            W = o[0]; self.A = o[1]; self.B = o[2]; self.C = o[3]; R = o[1] | o[2] | o[3]
            self.passes = 8 if "32x32" in op else 4
        elif self.valu:
            if op.startswith("v_nop"): pass
            elif op.startswith("v_permlane") and "swap" in op:
                W = o[0] | o[1]; R = o[0] | o[1]
            elif op.startswith(("v_add_co", "v_sub_co", "v_addc_co", "v_subb_co", "v_div_scale", "v_mad_u64")):
                W = o[0] | o[1]; R = set().union(*o[2:])
            else:
                W = o[0]; R = set().union(*o[1:]) if len(o) > 1 else set()
                if op.startswith(("v_fmac", "v_dot2c", "v_writelane")): R = R | o[0]
                if op.startswith("v_cmpx"): W = W | {("s", "exec")}
        elif self.vmem:
            if "load" in op and not self.lds_dma:
                W = o[0]; R = set().union(*o[1:])
                if "d16" in op: R = R | o[0]
            elif op.startswith("buffer_atomic") and "sc0" in rest:
                W = o[0]; R = set().union(*o)
            else:
                R = set().union(*o) if o else set()
                if self.lds_dma: R = R | {("s", "m0")}
            self.wide_store = ("store" in op and ("x4" in op or "x3" in op))
            if self.wide_store:
                self.sdata = o[0] if op.startswith("buffer") else o[1]
        elif self.ds:
            if "read" in op or "permute" in op or "swizzle" in op:
                W = o[0]; R = set().union(*o[1:])
            else:
                R = set().union(*o)
        elif self.salu:
            if op.startswith(("s_cmp", "s_cbranch", "s_branch", "s_waitcnt", "s_nop", "s_barrier", "s_endpgm", "s_sleep", "s_setprio", "s_bitcmp")):
                R = set().union(*o) if o else set()
            else:
                W = o[0] if o else set(); R = set().union(*o[1:]) if len(o) > 1 else set()
                if "saveexec" in op: W = W | {("s", "exec")}
        self.W = W; self.R = R
        self.states = 1
        if op == "s_nop": self.states = int(ops[0], 0) + 1

def need(p, c):
    n = 0
    pv = {r for r in p.W if r[0] == "v"}
    ps = {r for r in p.W if r[0] == "s"}
    if p.mfma:
        if c.mfma:
            if pv & (c.A | c.B): n = max(n, {4: 8, 8: 12}[p.passes])
            if pv & c.C and not (pv == c.C and p.passes == c.passes): n = max(n, {4: 6, 8: 10}[p.passes])
            if pv & c.W and not (pv & c.C) : n = max(n, {4: 6, 8: 10}[p.passes])
        elif c.valu or c.vmem or c.ds:
            if pv & (c.R | c.W): n = max(n, {4: 8, 8: 12}[p.passes])
        if c.valu and (p.C & c.W): n = max(n, {4: 3, 8: 7}[p.passes])
        if (c.ds or c.vmem) and (p.C & c.W): n = max(n, {4: 3, 8: 7}[p.passes])
    if p.valu:
        if c.mfma and pv & c.R: n = max(n, 2)
        if c.mfma and ("s", "exec") in ps: n = max(n, 4)
        if p.trans and c.valu and not c.trans and pv & (c.R | c.W): n = max(n, 1)
        if p.trans and (c.vmem or c.ds) and pv & c.R: n = max(n, 1)
        if c.op.startswith("v_permlane") and pv & c.R: n = max(n, 2)
        if c.op.startswith(("v_readlane", "v_readfirstlane")) and pv & c.R: n = max(n, 1)
        if c.valu and ps & c.R: n = max(n, 2)
        if c.vmem and ps & c.R: n = max(n, 5)
        if c.salu and ps & c.R and not c.op.startswith("s_cbranch"): n = max(n, 0)
        if p.dot and c.valu and pv & (c.R | c.W) and c.op != p.op: n = max(n, 3)
        if p.dot and (c.vmem or c.ds or c.mfma) and pv & c.R: n = max(n, 3)
        if "dpp" in c.line or "row_" in c.line:
            if pv & c.R: n = max(n, 2)
        if ("op_sel" in p.line and not p.op.startswith("v_pk_")) and c.valu and pv & (c.R | c.W): n = max(n, 1)
    if p.salu and ("s", "m0") in ps and c.lds_dma: n = max(n, 1)
    if p.vmem and getattr(p, "wide_store", False):
        if c.valu and p.sdata & c.W: n = max(n, 2)
        elif p.sdata & c.W: n = max(n, 1)
    return n

def check_hazards(lines, window=24):
    ins = []; labels = {}
    for l in lines:
        code = l.split(";")[0].strip()
        if not code or code.startswith("."): continue
        if code.endswith(":"):
            labels[code[:-1]] = len(ins); continue
        ins.append(I(code))
    def succ(i):
        x = ins[i]
        if x.op == "s_endpgm": return []
        if x.op == "s_branch": return [labels[x.ops[0]]]
        r = [i + 1] if i + 1 < len(ins) else []
        if x.op.startswith("s_cbranch"): r.append(labels[x.ops[0]])
        return r
    probs = []
    for i, p in enumerate(ins):
        if not (p.mfma or p.valu or p.salu or p.vmem): continue
        stack = [(j, 0) for j in succ(i)]
        seen = {}
        while stack:
            j, d = stack.pop()
            if d >= 20 or j >= len(ins): continue
            if seen.get(j, 99) <= d: continue
            seen[j] = d
            c = ins[j]
            n = need(p, c)
            if n > d:
                probs.append((i, j, n, d, p.line, c.line))
            for k in succ(j): stack.append((k, d + c.states))
    return probs
```

```python
import sys, struct, math
from asmlib import *

NAME = "gated_mix__linear_kernel_hedgehog__sliding_block__prompt_kernel"
def f2u(x): return struct.unpack("<I", struct.pack("<f", x))[0]
LOG2E = math.log2(math.e)

SLOT = 47104; WOFF = 16384
RG = 51200
SCR = 144384; SCRW = 4608
F1A = 0x0; F1B = 0x1000; F2 = 0x2000; GATE = 0x4000
KVP = 0x10000; KVP_SZ = 1792
KVB = 0x100000; OB = 0x800000; DBG = 0x1000000
SPIN = 400000

ACC = 128
def acc(tt, ft): return ACC + (tt * 4 + ft) * 4

sRB, sBR, sHG, sW = 22, 23, 24, 25
sROT = 30

def gen(opt):
    A = Asm()
    prof = opt.get("prof", 0)
    def stamp(k):
        if prof: A(f"s_memtime s[{80+2*k}:{81+2*k}]")
    A(f"""
    s_cmp_ge_u32 s2, 256
    s_cbranch_scc1 L_end
    s_load_dwordx8 s[36:43], s[0:1], 0
    s_load_dwordx8 s[44:51], s[0:1], 40
    s_load_dwordx4 s[52:55], s[0:1], 72
    """)
    if prof: A("s_memtime s[80:81]\ns_memrealtime s[98:99]")
    A(f"""
    v_lshrrev_b32 v1, 6, v0
    v_and_b32 v0, 63, v0
    s_and_b32 s20, s2, 7
    v_readfirstlane_b32 s25, v1             ; wave
    s_lshr_b32 s21, s2, 3
    s_and_b32 s26, s21, 7
    s_and_b32 s22, s20, 1
    s_lshl_b32 s22, s22, 3
    s_add_u32 s22, s22, s26                 ; rb
    s_lshr_b32 s27, s21, 3
    """)
    if opt["map"] == 1:
        A("""
        s_lshr_b32 s23, s20, 2                  ; br
        s_lshr_b32 s24, s20, 1
        s_and_b32 s24, s24, 1
        s_lshl_b32 s24, s24, 2
        s_add_u32 s24, s24, s27                 ; hg
        """)
    else:
        A("""
        s_and_b32 s23, s27, 1                   ; br
        s_lshr_b32 s24, s20, 1
        s_lshl_b32 s24, s24, 1
        s_lshr_b32 s28, s27, 1
        s_add_u32 s24, s24, s28                 ; hg
        """)
    rot = opt["rot"]
    if rot == 0: A("s_mov_b32 s30, 0")
    elif rot == 2: A("s_add_u32 s30, s26, s27\ns_and_b32 s30, s30, 1\ns_mul_i32 s30, s30, 5")
    elif rot == 4: A("s_add_u32 s30, s26, s27\ns_and_b32 s30, s30, 3\ns_mul_i32 s30, s30, 5\ns_lshr_b32 s30, s30, 1")
    elif rot == 8: A("s_lshl_b32 s30, s27, 1\ns_add_u32 s30, s26, s30\ns_and_b32 s30, s30, 7\ns_mul_i32 s30, s30, 5\ns_lshr_b32 s30, s30, 2")
    A(f"""
    s_mov_b32 s34, {SLOT}
    s_mov_b32 s6, 2621440
    s_mov_b32 s7, 0x20000
    s_mov_b32 s10, 2457600
    s_mov_b32 s11, 0x20000
    s_mov_b32 s14, 0x10000000
    s_mov_b32 s15, 0x20000
    s_mov_b32 s19, 0x20000
    s_lshl_b32 s56, s20, 2
    s_add_u32 s56, s56, s27
    s_mov_b32 s57, s26
    s_waitcnt lgkmcnt(0)
    s_mov_b32 s4, s36
    s_mov_b32 s5, s37
    s_cmp_eq_u32 s23, 0
    s_cselect_b32 s8, s38, s44
    s_cselect_b32 s9, s39, s45
    s_mov_b32 s12, s54
    s_mov_b32 s13, s55
    s_cmp_ge_u32 s25, 4
    s_cbranch_scc1 L_helper
    """)
    A(f"""
    s_setprio 1
    s_lshl_b32 s58, s24, 2
    s_add_u32 s58, s58, s25                 ; head
    s_lshl_b32 s28, s23, 3
    s_add_u32 s28, s28, s24
    s_lshl_b32 s28, s28, 2
    s_add_u32 s28, s28, s25
    s_lshl_b32 s28, s28, 1
    s_lshl_b32 s29, s22, 7
    s_add_u32 s28, s28, s29
    v_lshrrev_b32 v2, 5, v0                 ; h
    v_and_b32 v1, 31, v0                    ; i
    v_add_u32 v3, s28, v2
    v_lshlrev_b32 v4, 4, v1
    v_mov_b32 v5, 1280
    v_mad_u32_u24 v5, v3, v5, v4
    s_mov_b32 s16, s48
    s_mov_b32 s17, s49
    s_mov_b32 s18, 1280
    buffer_load_dwordx4 v[32:35], v5, s[4:7], 0 offen
    buffer_load_dwordx4 v[36:39], v5, s[4:7], 0 offen offset:512
    buffer_load_dwordx4 v[40:43], v5, s[4:7], 0 offen offset:1024
    buffer_load_dwordx4 v[44:47], v4, s[16:19], 0 offen
    buffer_load_dwordx4 v[48:51], v4, s[16:19], 0 offen offset:512
    buffer_load_dwordx4 v[52:55], v4, s[16:19], 0 offen offset:1024
    v_lshlrev_b32 v56, 2, v3
    s_add_u32 s28, s2, s25
    s_cmp_lg_u32 s28, 0
    s_cbranch_scc1 L_noinit
    v_mov_b32 v60, 0
    v_mov_b32 v61, 0
    v_mov_b32 v62, 0
    v_mov_b32 v63, 0
    v_lshlrev_b32 v57, 4, v0
    s_mov_b32 s28, 0
    """)
    for n in range(10):
        A(f"buffer_store_dwordx4 v[60:63], v57, s[12:15], s28 offen sc1\ns_add_u32 s28, s28, 1024")
    A(f"""
    s_waitcnt vmcnt(0)
    s_mov_b32 s16, s52
    s_mov_b32 s17, s53
    s_mov_b32 s18, 4
    v_mov_b32 v58, 1
    buffer_store_dword v58, v57, s[16:19], 0 offen sc1
    """)
    A.label("L_noinit")
    A(f"""
    s_cmp_eq_u32 s23, 0
    s_cbranch_scc1 L_preA
    v_lshlrev_b32 v3, 2, v2
    v_sub_u32 v3, v1, v3                    ; i - 4h
    v_mov_b32 v4, 0xff800000
    """)
    for vv in range(16):
        kk = 8 * (vv >> 2) + (vv & 3)
        A(f"v_cmp_le_i32 vcc, {kk}, v3\ns_nop 1\nv_cndmask_b32 v{16+vv}, v4, 0, vcc".replace("v4, 0, vcc", "v4, v59, vcc"))
    i0 = len(A.lines) - 48
    A.lines.insert(i0, "v_mov_b32 v59, 0")
    A("s_branch L_preDone")
    A.label("L_preA")
    A(f"""
    v_lshrrev_b32 v3, 3, v1                 ; q
    v_bfe_u32 v4, v1, 2, 1                  ; h'
    v_and_b32 v5, 3, v1                     ; r
    v_lshl_add_u32 v6, v3, 2, v5            ; vv = 4q+r
    v_mul_u32_u24 v7, 10, v4
    v_add_u32 v7, v7, v6                    ; f
    v_lshlrev_b32 v7, 1, v7
    s_mul_i32 s28, s58, 800
    v_add_u32 v7, s28, v7
    v_mov_b32 v57, 0x100000
    v_cmp_gt_u32 vcc, 10, v6
    v_mul_u32_u24 v58, 320, v2
    s_mov_b32 s16, s40
    v_cndmask_b32 v7, v57, v7, vcc
    v_cmp_eq_u32 vcc, 0, v2
    v_add_u32 v58, v58, v7
    s_mov_b32 s17, s41
    v_cndmask_b32 v7, v57, v7, vcc
    s_mov_b32 s18, 25600
    v_mov_b32 v22, 0
    v_mov_b32 v23, 0
    """)
    for j in range(8):
        A(f"buffer_load_ushort v{(64 if j&1 else 16)+(j>>1)}, v58, s[16:19], 0 offen offset:{j*40}")
    for j in range(4):
        A(f"buffer_load_ushort v{(68 if j&1 else 20)+(j>>1)}, v7, s[16:19], 0 offen offset:{(16+j)*40}")
    A(f"""
    v_mov_b32 v57, 99
    v_cmp_eq_u32 vcc, v2, v4
    v_and_b32 v58, 1, v6
    v_lshlrev_b32 v58, 4, v58
    v_cndmask_b32 v6, v57, v6, vcc
    v_mov_b32 v57, 0x3f80
    v_lshlrev_b32 v58, v58, v57
    v_lshrrev_b32 v6, 1, v6
    """)
    for n in range(8):
        A(f"v_cmp_eq_u32 vcc, {n}, v6\ns_nop 1\nv_cndmask_b32 v{24+n}, 0, v58, vcc")
    A.label("L_preDone")
    A(f"""
    v_and_b32 v1, 15, v0                    ; i16
    v_lshrrev_b32 v2, 4, v0                 ; g
    v_bfe_u32 v3, v0, 1, 3
    v_xor_b32 v3, v3, v2
    v_lshlrev_b32 v3, 4, v3
    v_lshl_add_u32 v8, v1, 7, v3
    v_xor_b32 v9, 64, v8
    v_bfe_u32 v3, v0, 2, 2                  ; r
    v_lshlrev_b32 v3, 1, v3
    v_bfe_u32 v4, v0, 4, 1
    v_add_u32 v3, v3, v4
    v_lshrrev_b32 v4, 5, v0
    v_lshl_add_u32 v3, v4, 4, v3            ; 16*(g>>1) + 2r + (g&1)
    v_mul_u32_u24 v3, 480, v3
    s_mul_i32 s28, s25, 40
    s_add_u32 s28, s28, {WOFF}
    v_add_u32 v3, s28, v3
    v_and_b32 v6, 3, v0                     ; c
    v_lshl_add_u32 v10, v6, 3, v3
    v_and_b32 v4, 1, v6
    v_lshrrev_b32 v5, 1, v6
    v_add_u32 v5, 1, v5
    v_mul_u32_u24 v5, v5, v4
    v_mul_u32_u24 v5, 160, v5
    v_add3_u32 v11, v5, v3, 32
    v_mov_b32 v12, 0
    """)
    for r in range(128): A(f"v_mov_b32 v{ACC+r}, 0")
    A("s_waitcnt vmcnt(0)\nv_mov_b32 v57, 0\nv_mov_b32 v58, 0")
    A("s_cmp_lg_u32 s23, 0\ns_cbranch_scc1 L_nopack")
    for n in range(6): A(f"v_lshl_or_b32 v{16+n}, v{64+n}, 16, v{16+n}")
    A.label("L_nopack")
    for r in range(12): A(f"v_dot2c_f32_bf16 v{57+(r&1)}, v{32+r}, v{44+r}")
    A(f"""
    s_mov_b32 s16, s52
    s_mov_b32 s17, s53
    s_mov_b32 s18, 4
    v_add_f32 v57, v57, v58
    s_nop 1
    v_add_f32_dpp v57, v57, v57 quad_perm:[1,0,3,2] row_mask:0xf bank_mask:0xf
    s_nop 1
    v_add_f32_dpp v57, v57, v57 quad_perm:[2,3,0,1] row_mask:0xf bank_mask:0xf
    s_nop 1
    v_add_f32_dpp v57, v57, v57 row_half_mirror row_mask:0xf bank_mask:0xf
    s_nop 1
    v_add_f32_dpp v57, v57, v57 row_mirror row_mask:0xf bank_mask:0xf
    v_mov_b32 v58, v57
    s_nop 1
    v_permlane16_swap_b32 v57, v58
    v_add_f32 v57, v57, v58
    v_mul_f32 v57, {hex(f2u(-LOG2E))}, v57
    v_exp_f32 v57, v57
    s_mov_b32 s28, 1
    v_add_f32 v57, 1.0, v57
    v_rcp_f32 v57, v57
    s_mov_b32 s29, 1
    s_mov_b64 exec, s[28:29]
    s_mov_b32 s28, {GATE}
    buffer_store_dword v57, v56, s[12:15], s28 offen sc1
    s_mov_b64 exec, -1
    """)
    XB = [32, 64]; WB = [96, 112]
    def reads(st, buf):
        L = []
        for ft in range(4):
            for jj in range(2):
                L.append(f"ds_read_b64_tr_b16 {v(WB[buf]+4*ft+2*jj,2)}, v{10+(ft==3)} offset:{(32*st+8*jj)*480 + (160*ft if ft<3 else 0)}")
        X = [f"ds_read_b128 {v(XB[buf]+4*tt,4)}, v{8+st} offset:{tt*2048}" for tt in range(8)]
        return [X[0]] + L + X[1:]
    def mfmas(buf):
        o = [(tt, ft if tt % 2 == 0 else 3 - ft) for tt in range(8) for ft in range(4)]
        return [f"v_mfma_f32_16x16x32_bf16 {v(acc(tt,ft),4)}, {v(WB[buf]+4*ft,4)}, {v(XB[buf]+4*tt,4)}, {v(acc(tt,ft),4)}" for tt, ft in o]
    A("s_mov_b32 s31, 0\ns_mov_b32 s32, 0\ns_barrier")
    for l in reads(0, 0): A(l)
    A.label("L_c_loop")
    for st in range(2):
        M = mfmas(st); R = reads(st ^ 1, st ^ 1)
        A("s_waitcnt lgkmcnt(0)")
        if st == 0:
            for n in range(32):
                A(M[n])
                if n < 16: A(R[n])
                if n == 20: A("buffer_load_dword v13, v12, s[16:19], 0 offen sc1")
        else:
            A(M[0]); A("s_add_u32 s32, s32, 1\ns_cmp_eq_u32 s32, 3")
            A(M[1]); A(f"s_cselect_b32 s33, {-2*SLOT & 0xffffffff}, s34\ns_cselect_b32 s32, 0, s32")
            A(M[2])
            for r in range(8, 12):
                A(f"v_add_u32 v{r}, s33, v{r}"); A(M[r-5])
            A("s_barrier")
            for n in range(7, 32):
                if n - 7 < 16: A(R[n-7])
                A(M[n])
                if n == 29: A("s_add_u32 s31, s31, 1\ns_cmp_lt_u32 s31, 10")
            A("s_cbranch_scc1 L_c_loop")
    stamp(1)
    A(f"""
    v_and_b32 v1, 31, v0
    v_lshrrev_b32 v2, 5, v0
    s_mul_i32 s28, s25, {SCRW}
    s_add_u32 s59, s28, {SCR}
    v_mul_u32_u24 v3, 48, v1
    v_add_u32 v3, s59, v3
    v_lshlrev_b32 v6, 3, v2
    v_sub_u32 v4, v3, v6
    v_add_u32 v4, 40, v4
    v_lshl_add_u32 v3, v2, 4, v3
    v_bfe_u32 v6, v0, 2, 2                  ; r
    v_lshl_add_u32 v6, v2, 2, v6
    v_bfe_u32 v7, v0, 4, 1
    v_and_b32 v14, 3, v0
    v_lshl_add_u32 v7, v7, 2, v14           ; sg = 4a + c
    v_min_u32 v14, 5, v7
    v_lshlrev_b32 v14, 3, v14
    v_mul_u32_u24 v5, 48, v6
    v_add3_u32 v5, v5, v14, s59
    v_mov_b32 v15, 0x3f803f80
    s_mov_b32 s60, -1
    s_mov_b32 s61, 0
    s_mov_b32 s62, 0x000fffff
    s_mov_b32 s63, 0x000fffff
    s_waitcnt vmcnt(0) lgkmcnt(0)
    v_readfirstlane_b32 s28, v13
    s_cmp_lg_u32 s28, 0
    s_cbranch_scc1 L_initok
    s_mov_b32 s29, 0
    """)
    A.label("L_initpoll")
    A(f"""
    buffer_load_dword v13, v12, s[16:19], 0 offen sc1
    s_add_u32 s29, s29, 1
    s_waitcnt vmcnt(0)
    v_readfirstlane_b32 s28, v13
    s_cmp_ge_u32 s29, {SPIN}
    s_cbranch_scc1 L_initok
    s_cmp_eq_u32 s28, 0
    s_cbranch_scc1 L_initpoll
    """)
    A.label("L_initok")
    A("s_cmp_eq_u32 s23, 0\ns_cbranch_scc1 L_A")

    def conv(t, ft, da, db):
        a = acc(2*t, ft); b = acc(2*t+1, ft)
        return ([f"v_cvt_pk_bf16_f32 v{da}, v{a}, v{a+1}", f"v_cvt_pk_bf16_f32 v{db}, v{b}, v{b+1}",
                 f"v_cvt_pk_bf16_f32 v{da+1}, v{a+2}, v{a+3}", f"v_cvt_pk_bf16_f32 v{db+1}, v{b+2}, v{b+3}"],
                [f"v_permlane16_swap_b32 v{da}, v{db}", f"v_permlane16_swap_b32 v{da+1}, v{db+1}"])
    Q1 = [32 + 4*t for t in range(4)]
    Q2d = [48, 52, 54, 58]
    Q2op = [48, 50, 54, 56]
    K1 = [60 + 4*u for u in range(4)]
    K2d = [76 + 2*u for u in range(4)]
    VT = [84 + 8*u for u in range(4)]
    VQ = [116, 120]
    VL = [124, 126]
    def vrows(t, slot):
        q = VQ[t & 1]; l = VL[t & 1]
        return [f"v_cndmask_b32 v{l}, v{K2d[t]}, v15, s[60:61]", f"v_cndmask_b32 v{l+1}, v{K2d[t]+1}, v15, s[60:61]",
                f"ds_write_b128 v3, {v(q,4)} offset:{slot}", f"ds_write_b64 v4, {v(l,2)} offset:{slot}"]
    def vtr(dst, slot):
        return [f"ds_read_b64_tr_b16 {v(dst+4*cc+2*jj,2)}, v5 offset:{slot + (16*cc+8*jj)*48}" for cc in range(2) for jj in range(2)]

    O = [128 + 16*t for t in range(4)]
    def o_store(eps):
        A(f"""
        s_lshl_b32 s28, s23, 5
        s_add_u32 s28, s28, s58
        s_lshl_b32 s29, s22, 7
        s_add_u32 s28, s28, s29
        s_mul_i32 s28, s28, 2560
        s_add_u32 s28, s28, {OB}
        s_add_u32 s29, s28, {64*2560}
        v_lshlrev_b32 v6, 4, v0
        """)
        for t in range(4):
            if eps: A(f"v_add_f32 v{O[t]+12}, {hex(f2u(eps))}, v{O[t]+12}")
            A(f"v_rcp_f32 v{O[t]+12}, v{O[t]+12}")
        for t in range(4):
            for n in range(6):
                A(f"v_pk_mul_f32 {v(O[t]+2*n,2)}, {v(O[t]+2*n,2)}, {v(O[t]+12,2)} op_sel_hi:[1,0]")
            pm = 192 + 4*t; pl = 208 + 2*t
            for n in range(4): A(f"v_cvt_pk_bf16_f32 v{pm+n}, v{O[t]+2*n}, v{O[t]+2*n+1}")
            for n in range(2): A(f"v_cvt_pk_bf16_f32 v{pl+n}, v{O[t]+8+2*n}, v{O[t]+9+2*n}")
            A(f"buffer_store_dwordx4 {v(pm,4)}, v6, s[12:15], s{28+(t>>1)} offen offset:{(t&1)*1024} sc1")
        A("s_mov_b64 exec, s[60:61]")
        for p in range(2):
            A(f"buffer_store_dwordx4 {v(208+4*p,4)}, v6, s[12:15], s{28+p} offen offset:2048 sc1")
        A("s_mov_b64 exec, -1")

    cs = (20 ** -0.5) * LOG2E
    A(f"""
    ; per-lane-group scale for tile 3: (c,1,0,1)
    v_bfe_u32 v6, v0, 4, 1
    v_mov_b32 v8, {hex(f2u(cs))}
    v_cndmask_b32 v8, 0, v8, s[60:61]
    v_cmp_eq_u32 vcc, 1, v6
    s_mov_b32 s64, {hex(f2u(cs))}
    s_mov_b32 s65, {hex(f2u(cs))}
    v_cndmask_b32 v8, v8, 1.0, vcc
    s_lshl_b32 s28, s58, 4
    s_add_u32 s28, s28, s22
    s_mul_i32 s66, s28, 10240
    s_add_u32 s66, s66, {KVB}               ; own K/V block
    s_add_u32 s67, s66, 4096
    s_add_u32 s68, s66, 5120
    s_add_u32 s69, s66, 7680
    v_lshlrev_b32 v10, 4, v0                ; lane*16
    v_lshlrev_b32 v11, 4, v1                ; i*16
    v_mul_u32_u24 v9, 320, v2
    v_add_u32 v9, v9, v11                   ; (h*20+i)*16
    v_mov_b32 v50, 0
    v_mov_b32 v51, 0
    v_mov_b32 v56, 0
    v_mov_b32 v57, 0
    """.replace("v_cndmask_b32 v8, v8, 1.0, vcc", "v_cndmask_b32_e64 v8, v8, 1.0, vcc"))
    for t in range(4):
        for tt in (2*t, 2*t+1):
            for n in range(2):
                A(f"v_pk_mul_f32 {v(acc(tt,3)+2*n,2)}, {v(acc(tt,3)+2*n,2)}, v[8:9] op_sel_hi:[1,0]")
        c3, s3 = conv(t, 3, Q2d[t], K2d[t])
        c2, s2 = conv(t, 2, VQ[t&1], VQ[t&1]+2)
        c1, s1 = conv(t, 1, K1[t], K1[t]+2)
        for l in c3 + c2 + s3 + c1 + s2: A(l)
        w = vrows(t, (t % 3) * 1536)
        A(w[0]); A(w[1]); A(w[2]); A(s1[0]); A(s1[1]); A(w[3])
        for l in vtr(VT[t], (t % 3) * 1536): A(l)
        A(f"buffer_store_dwordx4 {v(K1[t],4)}, v10, s[12:15], s66 offen offset:{t*1024} sc1")
    A("s_mov_b64 exec, s[60:61]")
    for p in range(2): A(f"buffer_store_dwordx4 {v(K2d[2*p],4)}, v10, s[12:15], s67 offen offset:{p*512} sc1")
    A("s_mov_b64 exec, s[62:63]\ns_waitcnt lgkmcnt(0)")
    for t in range(4):
        for cc in range(2):
            A(f"buffer_store_dwordx4 {v(VT[t]+4*cc,4)}, v9, s[12:15], s{68+(t>>1)} offen offset:{((t&1)*2+cc)*640} sc1")
    A("s_mov_b64 exec, -1")
    for t in range(4):
        for tt in (2*t, 2*t+1):
            for n in range(2):
                A(f"v_pk_mul_f32 {v(acc(tt,0)+2*n,2)}, {v(acc(tt,0)+2*n,2)}, s[64:65]")
    pend = []
    for t in range(4):
        c0, s0 = conv(t, 0, Q1[t], Q1[t]+2)
        for l in c0 + pend: A(l)
        pend = s0
    A("s_nop 0")
    for l in pend: A(l)
    stamp(2)
    S = [192, 208]; P = 224; MASK = 16
    started = set()
    def segment(pairs, hooks):
        def qk(n):
            t, u, m = pairs[n]; sb = S[n & 1]
            k2 = K2d[u] - (2 if t & 1 else 0)
            return (f"v_mfma_f32_32x32x16_bf16 {v(sb,16)}, {v(K1[u],4)}, {v(Q1[t],4)}, {v(MASK,16) if m else 0}",
                    f"v_mfma_f32_32x32x16_bf16 {v(sb,16)}, {v(k2,4)}, {v(Q2op[t],4)}, {v(sb,16)}")
        def pv(n, c):
            t, u, m = pairs[n]
            first = (c == 0 and t not in started)
            started.add(t)
            return f"v_mfma_f32_32x32x16_bf16 {v(O[t],16)}, {v(VT[u]+4*c,4)}, {v(P+4*c,4)}, {0 if first else v(O[t],16)}"
        def grp(n, g):
            sb = S[n & 1] + 4*g
            for r in range(4): A(f"v_exp_f32 v{sb+r}, v{sb+r}")
            A(f"v_cvt_pk_bf16_f32 v{P+2*g}, v{sb}, v{sb+1}")
            A(f"v_cvt_pk_bf16_f32 v{P+2*g+1}, v{sb+2}, v{sb+3}")
        N = len(pairs)
        A("s_nop 1")
        for l in hooks.get(-1, []): A(l)
        a, b = qk(0); A(a); A(b)
        A("s_nop 10")
        for n in range(N):
            if n + 1 < N:
                for l in hooks.get(("pre", n + 1), []): A(l)
                a, b = qk(n + 1); A(a)
            grp(n, 0)
            if n + 1 < N: A(b)
            grp(n, 1)
            if n > 0: A(pv(n - 1, 1))
            for l in hooks.get(n, []): A(l)
            grp(n, 2)
            for l in hooks.get(("prepv", n), []): A(l)
            A(pv(n, 0))
            grp(n, 3)
        A("s_nop 1")
        A(pv(N - 1, 1))
    own = [(t, u, t == u) for u in range(4) for t in range(u, 4)]
    flagB = [f"s_waitcnt vmcnt(0)", f"buffer_store_dword v14, v13, s[12:15], 0 offen sc1"]
    A(f"""
    s_lshl_b32 s28, s58, 7
    s_lshl_b32 s29, s22, 2
    s_add_u32 s28, s28, s29
    s_add_u32 s28, s28, {F1B}
    v_mov_b32 v13, s28
    v_mov_b32 v14, 1
    """)
    segment(own, {opt.get("flagpair", 5): flagB})
    stamp(3)
    A("s_barrier")
    A("s_cmp_eq_u32 s22, 0\ns_cbranch_scc1 L_B_fin")
    for vv in range(16): A(f"v_xor_b32 v{MASK+vv}, 0xff800000, v{MASK+vv}")
    A(f"""
    s_sub_u32 s70, s22, 1
    s_sub_u32 s71, s22, 2
    s_max_i32 s71, s71, 0
    s_sub_u32 s28, s22, s71
    s_lshl_b32 s28, s28, 2
    v_subrev_u32 v6, 4, v13
    v_subrev_u32 v7, s28, v13
    v_cndmask_b32 v6, v7, v6, s[60:61]
    s_mov_b32 s29, 0
    """)
    A.label("L_B_poll")
    A(f"""
    buffer_load_dword v7, v6, s[12:15], 0 offen sc1
    s_add_u32 s29, s29, 1
    s_cmp_ge_u32 s29, {SPIN}
    s_cbranch_scc1 L_B_go
    s_waitcnt vmcnt(0)
    v_cmp_eq_u32 vcc, 0, v7
    s_nop 1
    s_cmp_lg_u64 vcc, 0
    s_cbranch_scc1 L_B_poll
    """)
    A.label("L_B_go")
    stamp(4)
    def ldK1(u): return f"buffer_load_dwordx4 {v(K1[u],4)}, v10, s[12:15], s66 offen offset:{u*1024} sc1"
    def ldK2(p): return f"buffer_load_dwordx4 {v(K2d[2*p],4)}, v11, s[12:15], s67 offen offset:{p*512} sc1"
    def ldVT(u): return ["s_mov_b64 exec, s[62:63]"] + [f"buffer_load_dwordx4 {v(VT[u]+4*cc,4)}, v9, s[12:15], s{68+(u>>1)} offen offset:{((u&1)*2+cc)*640} sc1" for cc in range(2)] + ["s_mov_b64 exec, -1"]
    for r in range(66, 70): A(f"s_sub_u32 s{r}, s{r}, 10240")
    seq = []
    for u in range(4):
        A(ldK1(u)); seq.append(("K1", 0, u))
        if u % 2 == 0: A(ldK2(u >> 1)); seq.append(("K2", 0, u >> 1))
        for l in ldVT(u): A(l)
        seq += [("V", 0, u), ("V", 0, u)]
    A("s_sub_u32 s28, s70, s71\ns_mul_i32 s28, s28, 10240")
    for r in range(66, 70): A(f"s_sub_u32 s{r}, s{r}, s28")
    p2 = [(t, u, False) for u in range(4) for t in range(4)]
    hooks = {}
    def waitfor(key):
        last = max(i for i, k in enumerate(seq) if k == key)
        return f"s_waitcnt vmcnt({len(seq) - 1 - last})"
    hooks[-1] = [waitfor(("K2", 0, 0))]
    events = []
    for n in range(16):
        t, u, _ = p2[n]
        if n + 1 < 16 and p2[n+1][0] == 0:
            un = p2[n+1][1]
            hooks[("pre", n + 1)] = [waitfor(("K2", 0, 1) if un == 2 else ("K1", 0, un))]
        h = []
        if t == 0 and u > 0:
            h.append(ldK1(u - 1)); seq.append(("K1", 1, u - 1))
            h += ldVT(u - 1); seq += [("V", 1, u - 1)] * 2
        if t == 0 and u == 3:
            h.append(ldK2(0)); seq.append(("K2", 1, 0))
        hooks[n] = h
        if t == 0: hooks[("prepv", n)] = [waitfor(("V", 0, u))]
    segment(p2, hooks)
    stamp(5)
    A("s_cmp_eq_u32 s22, 1\ns_cbranch_scc1 L_B_fin")
    A(ldK2(1)); seq.append(("K2", 1, 1))
    A(ldK1(3)); seq.append(("K1", 1, 3))
    for l in ldVT(3): A(l)
    seq += [("V", 1, 3)] * 2
    p3 = [(t, u, t == u) for u in range(4) for t in range(u + 1)]
    hooks = {-1: [waitfor(("K2", 1, 0))]}
    for n in range(10):
        t, u, _ = p3[n]
        if n + 1 < 10 and p3[n+1][0] == 0:
            un = p3[n+1][1]
            if un == 2: hooks[("pre", n + 1)] = [waitfor(("K2", 1, 1))]
            if un == 3: hooks[("pre", n + 1)] = [waitfor(("K1", 1, 3))]
        if t == 0 and u == 3: hooks[("prepv", n)] = [waitfor(("V", 1, 3))]
    segment(p3, hooks)
    A.label("L_B_fin")
    A("s_waitcnt vmcnt(0)\ns_nop 7")
    stamp(6)
    o_store(0)
    A("s_branch L_P3pre")

    A.label("L_A")
    AVQ = [84 + 4*t for t in range(4)]; AVL = [100 + 2*t for t in range(4)]
    A(f"""
    s_mov_b32 s64, {hex(f2u(LOG2E))}
    s_mov_b32 s65, {hex(f2u(LOG2E))}
    v_mov_b32 v50, 0
    v_mov_b32 v51, 0
    v_mov_b32 v56, 0
    v_mov_b32 v57, 0
    v_mul_u32_u24 v8, 88, v1
    v_mul_u32_u24 v9, 40, v2
    s_add_u32 s28, s59, 1536
    v_add3_u32 v8, v8, v9, s28
    v_and_b32 v9, 1, v7                     ; h'
    v_mul_u32_u24 v9, 40, v9
    v_mul_u32_u24 v10, 88, v6
    v_add3_u32 v10, v10, v9, s28
    v_lshrrev_b32 v9, 1, v7                 ; q
    v_lshl_add_u32 v9, v9, 3, v10
    v_add_u32 v10, 32, v10
    """)
    pend = []
    for t in range(4):
        for ft, da, db in ((1, K1[t], K1[t]+2), (3, Q2d[t], K2d[t]), (2, AVQ[t], AVQ[t]+2), (0, Q1[t], Q1[t]+2)):
            c, sw = conv(t, ft, da, db)
            for l in c + pend: A(l)
            pend = sw
    A("s_nop 0")
    for l in pend: A(l)
    for t in range(4):
        A(f"v_cndmask_b32 v{AVL[t]}, v{K2d[t]}, v15, s[60:61]\nv_cndmask_b32 v{AVL[t]+1}, v{K2d[t]+1}, v15, s[60:61]")
    stamp(2)
    PT = [128 + 16*t for t in range(4)]
    E = 192
    TM = 212
    KV0, KV1 = 224, 240
    FR = 108
    def premfma(t, op1, op2):
        A(f"v_mfma_f32_32x32x16_bf16 {v(PT[t],16)}, v[16:19], {v(op1,4)}, 0")
        A(f"v_mfma_f32_32x32x16_bf16 {v(PT[t],16)}, v[20:23], {v(op2,4)}, {v(PT[t],16)}")
    def softmax2(p, dst):
        a, b, c, d = TM, TM+2, TM+4, TM+6
        A(f"""
        v_max3_f32 v{a}, v{p}, v{p+1}, v{p+2}
        v_max3_f32 v{b}, -v{p}, -v{p+1}, -v{p+2}
        """)
        for n in (3, 5, 7):
            A(f"v_max3_f32 v{a}, v{a}, v{p+n}, v{p+n+1}\nv_max3_f32 v{b}, v{b}, -v{p+n}, -v{p+n+1}")
        A(f"""
        v_max_f32 v{a}, v{a}, v{p+9}
        v_max_f32_e64 v{b}, v{b}, -v{p+9}
        s_nop 1
        v_permlane32_swap_b32 v{a}, v{b}
        v_max_f32 v{a}, v{a}, v{b}
        v_mul_f32 v{b}, {hex(f2u(-LOG2E))}, v{a}
        v_mul_f32 v{a}, {hex(f2u(-LOG2E))}, v{a}
        s_nop 1
        v_permlane32_swap_b32 v{a}, v{b}
        """)
        for n in range(5):
            A(f"v_pk_fma_f32 {v(E+2*n,2)}, {v(p+2*n,2)}, s[64:65], {v(a,2)} op_sel_hi:[1,1,0]")
        for n in range(5):
            A(f"v_pk_fma_f32 {v(E+10+2*n,2)}, {v(p+2*n,2)}, s[64:65], {v(b,2)} op_sel_hi:[1,1,0] neg_lo:[1,0,0] neg_hi:[1,0,0]")
        for n in range(20): A(f"v_exp_f32 v{E+n}, v{E+n}")
        A(f"v_pk_add_f32 {v(c,2)}, {v(E,2)}, {v(E+2,2)}\nv_pk_add_f32 {v(d,2)}, {v(E+10,2)}, {v(E+12,2)}")
        for n in (4, 6, 8):
            A(f"v_pk_add_f32 {v(c,2)}, {v(c,2)}, {v(E+n,2)}\nv_pk_add_f32 {v(d,2)}, {v(d,2)}, {v(E+10+n,2)}")
        A(f"""
        v_add_f32 v{c}, v{c}, v{c+1}
        v_add_f32 v{d}, v{d}, v{d+1}
        s_nop 1
        v_permlane32_swap_b32 v{c}, v{d}
        v_add_f32 v{c}, v{c}, v{d}
        v_rcp_f32 v{d}, v{c}
        v_rcp_f32 v{c}, v{c}
        s_nop 1
        v_permlane32_swap_b32 v{c}, v{d}
        """)
        for n in range(5):
            A(f"v_pk_mul_f32 {v(E+2*n,2)}, {v(E+2*n,2)}, {v(c,2)} op_sel_hi:[1,0]")
        for n in range(5):
            A(f"v_pk_mul_f32 {v(E+10+2*n,2)}, {v(E+10+2*n,2)}, {v(d,2)} op_sel_hi:[1,0]")
        for n in range(10): A(f"v_cvt_pk_bf16_f32 v{dst+n}, v{E+2*n}, v{E+2*n+1}")
    A("s_nop 1")
    for t in range(4): premfma(t, K1[t], K2d[t])
    A("s_nop 4")
    FS = [60, 72]
    def kvmfma(t):
        for cc in range(2):
            first = (t == 0 and cc == 0)
            A(f"v_mfma_f32_32x32x16_bf16 {v(KV0,16)}, {v(FS[cc],4)}, {v(FS[cc]+8,4)}, {0 if first else v(KV0,16)}")
            A(f"v_mfma_f32_32x32x16_bf16 {v(KV1,16)}, {v(FS[cc]+4,4)}, {v(FS[cc]+8,4)}, {0 if first else v(KV1,16)}")
    for t in range(4):
        A(f"ds_write_b128 v3, {v(AVQ[t],4)}\nds_write_b64 v4, {v(AVL[t],2)}")
        softmax2(PT[t], 108)
        if t > 0:
            A("s_waitcnt lgkmcnt(2)"); kvmfma(t - 1)
        for n in range(5): A(f"ds_write_b64 v8, {v(108+2*n,2)} offset:{8*n}")
        for cc in range(2):
            for jj in range(2):
                ro = 16*cc + 8*jj
                A(f"ds_read_b64_tr_b16 {v(FS[cc]+2*jj,2)}, v9 offset:{ro*88}")
                A(f"ds_read_b64_tr_b16 {v(FS[cc]+4+2*jj,2)}, v10 offset:{ro*88}")
                A(f"ds_read_b64_tr_b16 {v(FS[cc]+8+2*jj,2)}, v5 offset:{ro*48}")
        premfma(t, Q1[t], Q2d[t])
    A(f"""
    v_min_u32 v11, 20, v1
    v_mad_u32_u24 v11, v2, 21, v11
    v_lshlrev_b32 v12, 3, v11
    v_lshlrev_b32 v11, 4, v11
    s_lshl_b32 s28, s58, 4
    s_mul_i32 s66, s28, {KVP_SZ}
    s_add_u32 s66, s66, {KVP}
    s_mul_i32 s67, s22, {KVP_SZ}
    s_add_u32 s67, s67, s66
    s_lshl_b32 s28, s58, 7
    s_add_u32 s68, s28, {F1A}
    s_lshl_b32 s29, s22, 2
    s_add_u32 s28, s68, s29
    v_mov_b32 v13, s28
    v_mov_b32 v14, 1
    s_waitcnt lgkmcnt(0)
    """)
    kvmfma(3)
    A("s_barrier")
    A("s_mov_b32 s28, 0x010fffff\ns_mov_b32 s29, 0x010fffff\ns_nop 8")
    for n in range(8): A(f"v_cvt_pk_bf16_f32 v{108+n}, v{KV0+2*n}, v{KV0+2*n+1}")
    for n in range(2): A(f"v_cvt_pk_bf16_f32 v{116+n}, v{KV1+2*n}, v{KV1+2*n+1}")
    A(f"""
    s_mov_b64 exec, s[28:29]
    buffer_store_dwordx4 v[108:111], v11, s[12:15], s67 offen sc1
    buffer_store_dwordx4 v[112:115], v11, s[12:15], s67 offen offset:672 sc1
    buffer_store_dwordx2 v[116:117], v12, s[12:15], s67 offen offset:1344 sc1
    s_mov_b64 exec, -1
    """)
    stamp(3)
    PQ = [32 + 10*t for t in range(4)]
    for t in range(4):
        softmax2(PT[t], PQ[t])
        if t == opt.get("flagA", 1):
            A("s_waitcnt vmcnt(0)\nbuffer_store_dword v14, v13, s[12:15], 0 offen sc1")
    stamp(4)
    A(f"""
    v_and_b32 v6, 15, v0
    v_lshl_add_u32 v6, v6, 2, s68
    s_mov_b32 s29, 0
    """)
    A.label("L_A_poll")
    A(f"""
    buffer_load_dword v7, v6, s[12:15], 0 offen sc1
    s_add_u32 s29, s29, 1
    s_cmp_ge_u32 s29, {SPIN}
    s_cbranch_scc1 L_A_go
    s_waitcnt vmcnt(0)
    v_cmp_eq_u32 vcc, 0, v7
    s_nop 1
    s_cmp_lg_u64 vcc, 0
    s_cbranch_scc1 L_A_poll
    """)
    A.label("L_A_go")
    stamp(5)
    NB = 14
    PB = [76 + 10*n for n in range(NB)]
    for n in range(NB): A(f"v_mov_b32 v{PB[n]+10}, 0\nv_mov_b32 v{PB[n]+11}, 0")
    def ldp(n):
        b = PB[n % NB]
        A(f"""
        buffer_load_dwordx4 {v(b,4)}, v11, s[12:15], s66 offen sc1
        buffer_load_dwordx4 {v(b+4,4)}, v11, s[12:15], s66 offen offset:672 sc1
        buffer_load_dwordx2 {v(b+8,2)}, v12, s[12:15], s66 offen offset:1344 sc1
        s_add_u32 s66, s66, {KVP_SZ}
        """)
    for n in range(NB): ldp(n)
    issued = NB
    for n in range(16):
        b = PB[n % NB]
        A(f"s_waitcnt vmcnt({3*(issued-1-n)})")
        A(f"v_mfma_f32_32x32x16_bf16 {v(KV0,16)}, v[24:27], {v(b,4)}, {0 if n==0 else v(KV0,16)}")
        A(f"v_mfma_f32_32x32x16_bf16 {v(KV1,16)}, v[24:27], {v(b+8,4)}, {0 if n==0 else v(KV1,16)}")
        A(f"v_mfma_f32_32x32x16_bf16 {v(KV0,16)}, v[28:31], {v(b+4,4)}, {v(KV0,16)}")
        if n >= 1 and issued < 16:
            ldp(issued); issued += 1
    A("v_mov_b32 v26, 0\nv_mov_b32 v27, 0\ns_nop 9")
    for n in range(2): A(f"v_cvt_pk_bf16_f32 v{24+n}, v{KV1+2*n}, v{KV1+2*n+1}")
    for n in range(8): A(f"v_cvt_pk_bf16_f32 v{16+n}, v{KV0+2*n}, v{KV0+2*n+1}")
    A("s_nop 1")
    for c in range(3):
        for t in range(4):
            A(f"v_mfma_f32_32x32x16_bf16 {v(O[t],16)}, {v(16+4*c,4)}, {v(PQ[t]+4*c,4)}, {0 if c==0 else v(O[t],16)}")
    A("s_nop 3")
    stamp(6)
    o_store(1e-6)
    A("s_branch L_P3pre")

    A.label("L_helper")
    A(f"""
    s_sub_u32 s35, s25, 4                   ; w
    v_lshrrev_b32 v1, 3, v0
    s_lshl_b32 s28, s22, 7
    s_lshl_b32 s29, s35, 3
    s_add_u32 s28, s28, s29
    v_add_u32 v1, s28, v1
    v_mul_u32_u24 v1, 1280, v1
    s_and_b32 s29, s35, 1
    s_lshl_b32 s28, s29, 2
    v_lshrrev_b32 v3, 4, v0
    v_add_u32 v3, s28, v3
    v_xor_b32 v3, v3, v0
    v_and_b32 v3, 7, v3
    v_lshl_add_u32 v1, v3, 4, v1            ; x voffset
    v_cmp_le_u32 vcc, 30, v0
    v_subrev_u32 v4, 30, v0
    v_mov_b32 v5, {8*3840}
    v_cndmask_b32 v4, v0, v4, vcc           ; rem
    v_cndmask_b32 v5, 0, v5, vcc
    v_mul_u32_u24 v6, 26, v4
    v_lshrrev_b32 v6, 8, v6                 ; part
    v_mul_u32_u24 v6, {1280-160}, v6
    v_lshl_add_u32 v4, v4, 4, v6
    s_mul_i32 s28, s24, 160
    s_mul_i32 s29, s35, 3840
    s_add_u32 s28, s28, s29
    v_add3_u32 v2, v4, v5, s28              ; W voffset
    s_mov_b32 s60, -1
    s_mov_b32 s61, 0x0fffffff
    s_lshl_b32 s62, s35, 10                 ; x m0 base
    s_mul_i32 s63, s35, 960
    s_add_u32 s63, s63, {WOFF}              ; W m0 base
    s_mov_b32 s64, s30
    s_mov_b32 s65, 0
    s_mov_b32 s31, -2
    """)
    A.label("L_h_loop")
    A("""
    s_cmp_lt_i32 s31, 0
    s_cbranch_scc1 L_h_issue
    s_waitcnt vmcnt(12)
    s_barrier
    """)
    A.label("L_h_issue")
    A("""
    s_lshl_b32 s66, s64, 7
    s_add_u32 m0, s62, s65
    s_mul_i32 s67, s64, 245760
    """)
    for i in range(4):
        A("buffer_load_dwordx4 v1, s[4:7], s66 offen lds")
        if i < 3: A(f"s_add_u32 m0, m0, 4096\ns_add_u32 s66, s66, {32*1280}")
    A("s_add_u32 m0, s63, s65\ns_mov_b64 exec, s[60:61]")
    for u in range(8):
        A("buffer_load_dwordx4 v2, s[8:11], s67 offen lds")
        if u < 7: A(f"s_add_u32 m0, m0, 3840\ns_add_u32 s67, s67, {(4 if u%2==0 else 12)*3840}")
    A(f"""
    s_mov_b64 exec, -1
    s_add_u32 s64, s64, 1
    s_cmp_eq_u32 s64, 10
    s_cselect_b32 s64, 0, s64
    s_add_u32 s65, s65, {SLOT}
    s_cmp_eq_u32 s65, {3*SLOT}
    s_cselect_b32 s65, 0, s65
    s_add_u32 s31, s31, 1
    s_cmp_lt_i32 s31, 8
    s_cbranch_scc1 L_h_loop
    s_waitcnt vmcnt(12)
    s_barrier
    s_lshr_b32 s28, s35, 1
    s_cmp_eq_u32 s28, 0
    s_cselect_b32 s16, s42, s46
    s_cselect_b32 s17, s43, s47
    s_mov_b32 s18, 819200
    v_mul_u32_u24 v4, 26, v0
    v_lshrrev_b32 v4, 8, v4
    v_mul_u32_u24 v4, {1280-160}, v4
    v_lshl_add_u32 v4, v0, 4, v4
    s_mul_i32 s28, s57, 160
    s_and_b32 s29, s35, 1
    s_mul_i32 s29, s29, {80*1280}
    s_add_u32 s28, s28, s29
    v_add_u32 v2, s28, v4
    s_mul_i32 s62, s35, 12800
    s_mov_b32 s60, -1
    s_mov_b32 s61, 0x0003ffff               ; 50 lanes
    s_waitcnt vmcnt(0)
    s_barrier
    s_barrier
    """)
    def wo_group(G, region):
        A(f"""
        s_add_u32 s28, s57, {G}
        s_and_b32 s28, s28, 3
        s_mul_i32 s67, s28, {160*1280}
        s_add_u32 m0, s62, {region*RG}
        s_mov_b64 exec, s[60:61]
        s_mov_b32 s31, 0
        """)
        A.label(f"L_wo{G}")
        for n in range(4):
            A(f"buffer_load_dwordx4 v2, s[16:19], s67 offen lds\ns_add_u32 m0, m0, 800\ns_add_u32 s67, s67, {5*1280}")
        A(f"s_add_u32 s31, s31, 1\ns_cmp_lt_u32 s31, 4\ns_cbranch_scc1 L_wo{G}\ns_mov_b64 exec, -1")
    wo_group(0, 0); wo_group(1, 1)
    A("s_waitcnt vmcnt(16)\ns_barrier                               ; b11")
    wo_group(2, 2)

    A.label("L_P3pre")
    OF = 16; WF = 96; PACC = 216; WX = [196, 236]
    A(f"""
    s_lshr_b32 s72, s25, 2                  ; kh
    s_and_b32 s73, s25, 3                   ; tq
    v_lshrrev_b32 v2, 4, v0                 ; g
    v_bfe_u32 v3, v0, 2, 2                  ; r
    v_and_b32 v4, 3, v0                     ; c
    v_mul_u32_u24 v4, 40, v4
    s_mul_i32 s28, s72, 25600
    v_add_u32 v4, s28, v4
    v_lshrrev_b32 v5, 5, v0
    v_mul_u32_u24 v5, 20, v5
    v_bfe_u32 v6, v0, 4, 1
    v_lshl_add_u32 v5, v6, 2, v5
    v_add_u32 v5, v5, v3                    ; 20*(g>>1) + 4*(g&1) + r
    v_mov_b32 v7, 160
    v_mad_u32_u24 v8, v5, v7, v4
    v_mad_u32_u24 v5, v2, 20, v3
    v_add_u32 v5, 16, v5                    ; 20g + 16 + r
    v_mad_u32_u24 v9, v5, v7, v4
    """)
    def wreads(s5, dst, am, al):
        L = []
        for ct in range(5):
            for jj in range(2):
                if s5 < 4: L.append(f"ds_read_b64_tr_b16 {v(dst+4*ct+2*jj,2)}, v{am} offset:{(40*s5+8*jj)*160 + 8*ct}")
                else: L.append(f"ds_read_b64_tr_b16 {v(dst+4*ct+2*jj,2)}, v{al} offset:{80*jj*160 + 8*ct}")
        return L
    for s5 in range(5):
        for l in wreads(s5, WF + 20*s5, 8, 9): A(l)
    A(f"""
    v_and_b32 v3, 7, v0
    s_lshl_b32 s28, s73, 3
    v_add_u32 v3, s28, v3                   ; i
    v_bfe_u32 v4, v0, 3, 1                  ; p
    v_lshlrev_b32 v5, 4, v3
    v_lshl_add_u32 v10, v4, 10, v5
    v_lshl_add_u32 v10, v6, 9, v10
    v_lshrrev_b32 v7, 5, v0
    v_mul_u32_u24 v7, 2560, v7
    v_add_u32 v10, v10, v7
    v_lshl_add_u32 v11, v4, 3, v5
    v_mul_u32_u24 v7, 2560, v2
    v_add_u32 v11, v11, v7
    v_lshl_add_u32 v12, v4, 5, v3
    s_lshl_b32 s28, s56, 6
    v_add_u32 v12, s28, v12                 ; token
    s_lshl_b32 s29, s72, 5
    s_add_u32 s28, s28, s29
    s_mul_i32 s74, s28, 2560
    s_add_u32 s74, s74, {OB}
    s_waitcnt vmcnt(0) lgkmcnt(0)
    s_barrier
    """)
    stamp(7)
    A(f"""
    s_cmp_ge_u32 s25, 4
    s_cbranch_scc1 L_P3_h
    s_cmp_lg_u32 s25, 0
    s_cbranch_scc1 L_P3_wait
    s_lshl_b32 s28, s23, 3
    s_add_u32 s28, s28, s24
    s_lshl_b32 s28, s28, 2
    s_lshl_b32 s29, s22, 7
    s_add_u32 s28, s28, s29
    s_add_u32 s28, s28, {F2}
    v_mov_b32 v13, s28
    v_mov_b32 v14, 1
    buffer_store_dword v14, v13, s[12:15], 0 offen sc1
    s_lshr_b32 s28, s56, 1
    s_lshl_b32 s28, s28, 7
    s_add_u32 s28, s28, {F2}
    v_and_b32 v13, 15, v0
    v_lshl_add_u32 v13, v13, 2, s28
    s_mov_b32 s29, 0
    """)
    A.label("L_P3_poll")
    A(f"""
    buffer_load_dword v14, v13, s[12:15], 0 offen sc1
    s_add_u32 s29, s29, 1
    s_cmp_ge_u32 s29, {SPIN}
    s_cbranch_scc1 L_P3_wait
    s_waitcnt vmcnt(0)
    v_cmp_eq_u32 vcc, 0, v14
    s_nop 1
    s_cmp_lg_u64 vcc, 0
    s_cbranch_scc1 L_P3_poll
    s_branch L_P3_wait
    """)
    A.label("L_P3_h")
    A(f"""
    v_mul_u32_u24 v13, 26, v0
    v_lshrrev_b32 v13, 8, v13
    v_mul_u32_u24 v13, {1280-160}, v13
    v_lshl_add_u32 v13, v0, 4, v13
    s_mul_i32 s28, s57, 160
    s_and_b32 s29, s35, 1
    s_mul_i32 s29, s29, {80*1280}
    s_add_u32 s28, s28, s29
    v_add_u32 v13, s28, v13
    """)
    n0 = len(A.lines)
    wo_group(3, 0)
    A.lines[n0:] = [l.replace("dwordx4 v2,", "dwordx4 v13,") for l in A.lines[n0:]]
    A("s_waitcnt vmcnt(0)")
    A.label("L_P3_wait")
    A("s_barrier")
    stamp(8)
    nload = []
    for G in range(4):
        A(f"s_add_u32 s28, s57, {G}\ns_and_b32 s28, s28, 3\ns_mul_i32 s28, s28, {8*2560}\ns_add_u32 s28, s28, s74\ns_add_u32 s29, s28, {4*2560}\ns_mov_b32 s75, s28")
        for s5 in range(4):
            A(f"buffer_load_dwordx4 {v(OF+20*G+4*s5,4)}, v10, s[12:15], s75 offen sc1")
            if s5 < 3: A("s_add_u32 s75, s75, 5120")
            nload.append(1)
        A(f"buffer_load_dwordx2 {v(OF+20*G+16,2)}, v11, s[12:15], s28 offen offset:2048 sc1")
        A(f"buffer_load_dwordx2 {v(OF+20*G+18,2)}, v11, s[12:15], s29 offen offset:2048 sc1")
        nload.append(2)
    A(f"v_lshlrev_b32 v13, 2, v12\ns_mov_b32 s28, {GATE}\nbuffer_load_dword v14, v13, s[12:15], s28 offen sc1")
    total = sum(nload) + 1
    A(f"""
    v_add_u32 v2, {RG}, v8
    v_add_u32 v3, {RG}, v9
    v_add_u32 v4, {2*RG}, v8
    v_add_u32 v5, {2*RG}, v9
    """)
    areg = {1: (2, 3), 2: (4, 5), 3: (8, 9)}
    done = 0
    for n in range(20):
        done += nload[n]
        w = []
        if n >= 5: w.append("lgkmcnt(10)" if n < 19 else "lgkmcnt(0)")
        A(f"s_waitcnt vmcnt({total-done}) " + " ".join(w))
        buf = WF + 20*(n % 5)
        nx = n + 2
        R = wreads(nx % 5, WF + 20*(nx % 5), *areg[nx // 5]) if (5 <= nx < 20) else []
        for ct in range(5):
            A(f"v_mfma_f32_16x16x32_bf16 {v(PACC+4*ct,4)}, {v(buf+4*ct,4)}, {v(OF+4*n,4)}, {0 if n==0 else v(PACC+4*ct,4)}")
            if R: A(R[2*ct]); A(R[2*ct+1])
    A(f"""
    s_mul_i32 s28, s73, 5120
    s_add_u32 s28, s28, {RG}
    v_lshl_add_u32 v2, v0, 4, s28
    s_waitcnt vmcnt(0)
    s_barrier
    s_cmp_eq_u32 s72, 0
    s_cbranch_scc1 L_P3_lo
    v_sub_f32 v14, 1.0, v14
    """)
    for n in range(10): A(f"v_pk_mul_f32 {v(PACC+2*n,2)}, {v(PACC+2*n,2)}, v[14:15] op_sel_hi:[1,0]")
    for ct in range(5): A(f"ds_write_b128 v2, {v(PACC+4*ct,4)} offset:{ct*1024}")
    A("s_waitcnt lgkmcnt(0)\ns_barrier\ns_endpgm")
    A.label("L_P3_lo")
    A(f"""
    s_mov_b32 s16, s50
    s_mov_b32 s17, s51
    s_mov_b32 s18, 2621440
    v_mul_u32_u24 v12, 1280, v12
    v_lshrrev_b32 v3, 4, v0
    v_mul_u32_u24 v3, 40, v3
    s_mul_i32 s28, s57, 160
    v_add3_u32 v12, v12, v3, s28
    s_barrier                               ; b15
    """)
    for ct in range(5): A(f"ds_read_b128 {v(16+4*ct,4)}, v2 offset:{ct*1024}")
    for ct in range(5):
        A(f"s_waitcnt lgkmcnt({4-ct})")
        for n in range(2): A(f"v_pk_fma_f32 {v(16+4*ct+2*n,2)}, {v(PACC+4*ct+2*n,2)}, v[14:15], {v(16+4*ct+2*n,2)} op_sel_hi:[1,0,1]")
        for n in range(2): A(f"v_cvt_pk_bf16_f32 v{40+2*ct+n}, v{16+4*ct+2*n}, v{17+4*ct+2*n}")
    for n in range(5): A(f"buffer_store_dwordx2 {v(40+2*n,2)}, v12, s[16:19], 0 offen offset:{8*n}")
    if prof:
        A("s_waitcnt vmcnt(0)\ns_memtime s[76:77]\ns_memrealtime s[100:101]\ns_waitcnt lgkmcnt(0)")
        for k in range(1, 9): A(f"s_sub_u32 s{80+2*k}, s{80+2*k}, s80\nv_mov_b32 v{16+k}, s{80+2*k}")
        A(f"""
        s_sub_u32 s76, s76, s80
        v_mov_b32 v16, s76
        v_mov_b32 v25, s98
        v_mov_b32 v26, s100
        v_mov_b32 v27, 0
        s_lshl_b32 s28, s2, 2
        s_add_u32 s28, s28, s25
        s_lshl_b32 s28, s28, 6
        s_add_u32 s28, s28, {DBG}
        v_mov_b32 v2, 0
        buffer_store_dwordx4 v[16:19], v2, s[12:15], s28 offen
        buffer_store_dwordx4 v[20:23], v2, s[12:15], s28 offen offset:16
        buffer_store_dwordx4 v[24:27], v2, s[12:15], s28 offen offset:32
        """)
    A.label("L_end")
    return A

HEADER = open("gated_mix__linear_kernel_hedgehog__sliding_block__prompt.s.ref").read().split("; Override")[0] if __name__ == "__main__" else ""
def wrap(A, lds=163840, header=""):
    hdr = header + f"; @launch grid=(256,1,1) block=(512,1,1) lds={lds}\n"
    return hdr + f""".amdgcn_target "amdgcn-amd-amdhsa--gfx950"
.text
.globl {NAME}
.p2align 8
.type {NAME},@function
{NAME}:
{A.text()}    s_endpgm
.section .rodata,"a"
.p2align 6
.amdhsa_kernel {NAME}
  .amdhsa_next_free_vgpr 256
  .amdhsa_next_free_sgpr 102
  .amdhsa_accum_offset 256
  .amdhsa_group_segment_fixed_size 0
  .amdhsa_kernarg_size 88
  .amdhsa_user_sgpr_count 2
  .amdhsa_user_sgpr_kernarg_segment_ptr 1
  .amdhsa_system_sgpr_workgroup_id_x 1
.end_amdhsa_kernel
"""
if __name__ == "__main__":
    opt = {"map": 1, "rot": 2}
    out = "k2.s"
    for a in sys.argv[1:]:
        if "=" in a:
            k, x = a.split("="); opt[k] = int(x)
        else: out = a
    A = gen(opt)
    for p in check_hazards(A.lines): print("HAZARD", p)
    open(out, "w").write(wrap(A, header=HEADER))
```

```python
import sys
import gen2 as G
from asmlib import *
def build(opt, mode, out, wgsel=None):
    A = G.gen(dict(opt, prof=1))
    L = A.lines
    i = L.index("s_memtime s[76:77]")
    j = L.index("L_end:")
    L = [l.replace("s_memtime", "s_memrealtime") for l in L[:i]]
    L += ["s_memrealtime s[76:77]", "s_waitcnt lgkmcnt(0)"]
    if mode == "fixed":
        L += ["s_mov_b32 s28, 6000"]
    else:
        a, b = mode
        ra = 76 if a == 9 else 80+2*a; rb = 76 if b == 9 else 80+2*b
        L += [f"s_sub_u32 s28, s{rb}, s{ra}", "s_mul_i32 s28, s28, 4", "s_min_u32 s28, s28, 40000", "s_add_u32 s28, s28, 6000"]
        if wgsel is not None:
            L += [f"s_cmp_eq_u32 s2, {wgsel}", "s_cselect_b32 s28, s28, 0"]
    L += ["L_spin:", "s_memrealtime s[76:77]", "s_waitcnt lgkmcnt(0)", "s_sub_u32 s29, s76, s80", "s_cmp_lt_u32 s29, s28", "s_cbranch_scc1 L_spin", "L_end:"]
    A.lines = L
    open(out, "w").write(G.wrap(A))
if __name__ == "__main__":
    opt = {"map":1,"rot":2}
    d = "cdna_kernels/"
    build(opt, "fixed", d+"p_fixed.s")
    build(opt, (0,9), d+"p_09.s", 100)
    build(opt, (0,1), d+"p_01.s", 100)
    build(opt, (1,6), d+"p_16.s", 100)
    build(opt, (6,8), d+"p_68.s", 100)
    build(opt, (8,9), d+"p_89.s", 100)
```

```python
import probe, gen2 as G
d = "cdna_kernels/"
opt = {"map":1,"rot":2}
probe.build(opt, "fixed", d+"p_fixed.s")
base = open(d+"p_fixed.s").read()
s = base
for n in range(5):
    s = s.replace(f"v12, s[16:19], 0 offen offset:{8*n}\n", f"v12, s[16:19], 0 offen offset:{8*n} sc1\n")
open(d+"p_fixed_sc1.s","w").write(s)
empty = """
.text
.globl empty_kernel
.p2align 8
.type empty_kernel,@function
empty_kernel:
    s_endpgm
.section .rodata,"a"
.p2align 6
.amdhsa_kernel empty_kernel
  .amdhsa_next_free_vgpr 8
  .amdhsa_next_free_sgpr 16
  .amdhsa_accum_offset 8
  .amdhsa_group_segment_fixed_size 0
  .amdhsa_kernarg_size 88
  .amdhsa_user_sgpr_count 2
  .amdhsa_user_sgpr_kernarg_segment_ptr 1
  .amdhsa_system_sgpr_workgroup_id_x 1
.end_amdhsa_kernel
"""
main = f"; @launch kernel={G.NAME} grid=(256,1,1) block=(512,1,1) lds=163840\n"
e = "; @launch kernel=empty_kernel grid=(256,1,1) block=(256,1,1) lds=0\n"
body = base.split("\n",1)[1] + empty
open(d+"p_list_m.s","w").write(main + body)
open(d+"p_list_em.s","w").write(e + main + body)
open(d+"p_list_me.s","w").write(main + e + body)
open(d+"p_list_eeme.s","w").write(e + e + main + e + e + body)
```

```python
import re

class Asm:
    def __init__(self):
        self.lines = []
    def __call__(self, s=""):
        for l in s.split("\n"):
            l = l.strip()
            if l:
                self.lines.append(l)
    def label(self, name):
        self.lines.append(name + ":")
    def text(self):
        out = []
        for l in self.lines:
            if l.endswith(":") or l.startswith("."):
                out.append(l)
            else:
                out.append("    " + l)
        return "\n".join(out) + "\n"

def v(a, n=1):
    return f"v{a}" if n == 1 else f"v[{a}:{a+n-1}]"
def s(a, n=1):
    return f"s{a}" if n == 1 else f"s[{a}:{a+n-1}]"

_reg = re.compile(r"(?<![\w])([vs])(?:(\d+)|\[(\d+):(\d+)\])")
def regs_of(op):
    out = set()
    for m in _reg.finditer(op):
        k = m.group(1)
        if m.group(2) is not None:
            out.add((k, int(m.group(2))))
        else:
            for i in range(int(m.group(3)), int(m.group(4)) + 1):
                out.add((k, i))
    if re.search(r"\bvcc(_lo|_hi)?\b", op): out |= {("s", "vcc")}
    if re.search(r"\bexec\b", op): out |= {("s", "exec")}
    if re.search(r"\bm0\b", op): out |= {("s", "m0")}
    return out

TRANS = ("v_exp_", "v_log_", "v_rcp_", "v_rsq_", "v_sqrt_", "v_sin_", "v_cos_")
class I:
    def __init__(self, line):
        self.line = line
        code = line.split(";")[0].strip()
        p = code.split(None, 1)
        self.op = p[0]
        rest = p[1] if len(p) > 1 else ""
        ops = []; depth = 0; cur = ""
        for ch in rest:
            if ch == "[": depth += 1
            if ch == "]": depth -= 1
            if ch == "," and depth == 0:
                ops.append(cur.strip()); cur = ""
            else: cur += ch
        if cur.strip(): ops.append(cur.strip())
        self.ops = ops
        op = self.op
        self.mfma = op.startswith("v_mfma")
        self.valu = op.startswith("v_") and not self.mfma
        self.trans = op.startswith(TRANS)
        self.dot = op.startswith("v_dot")
        self.vmem = op.startswith(("buffer_", "global_", "flat_"))
        self.ds = op.startswith("ds_")
        self.salu = op.startswith("s_")
        self.lds_dma = self.vmem and " lds" in (" " + rest)
        W = set(); R = set()
        o = [regs_of(x) for x in ops]
        if self.mfma:
            W = o[0]; self.A = o[1]; self.B = o[2]; self.C = o[3]; R = o[1] | o[2] | o[3]
            self.passes = 8 if "32x32" in op else 4
        elif self.valu:
            if op.startswith("v_nop"): pass
            elif op.startswith("v_permlane") and "swap" in op:
                W = o[0] | o[1]; R = o[0] | o[1]
            elif op.startswith(("v_add_co", "v_sub_co", "v_addc_co", "v_subb_co", "v_div_scale", "v_mad_u64")):
                W = o[0] | o[1]; R = set().union(*o[2:])
            else:
                W = o[0]; R = set().union(*o[1:]) if len(o) > 1 else set()
                if op.startswith(("v_fmac", "v_dot2c", "v_writelane")): R = R | o[0]
                if op.startswith("v_cmpx"): W = W | {("s", "exec")}
        elif self.vmem:
            if "load" in op and not self.lds_dma:
                W = o[0]; R = set().union(*o[1:])
                if "d16" in op: R = R | o[0]
            elif op.startswith("buffer_atomic") and "sc0" in rest:
                W = o[0]; R = set().union(*o)
            else:
                R = set().union(*o) if o else set()
                if self.lds_dma: R = R | {("s", "m0")}
            self.wide_store = ("store" in op and ("x4" in op or "x3" in op))
            if self.wide_store:
                self.sdata = o[0] if op.startswith("buffer") else o[1]
        elif self.ds:
            if "read" in op or "permute" in op or "swizzle" in op:
                W = o[0]; R = set().union(*o[1:])
            else:
                R = set().union(*o)
        elif self.salu:
            if op.startswith(("s_cmp", "s_cbranch", "s_branch", "s_waitcnt", "s_nop", "s_barrier", "s_endpgm", "s_sleep", "s_setprio", "s_bitcmp")):
                R = set().union(*o) if o else set()
            else:
                W = o[0] if o else set(); R = set().union(*o[1:]) if len(o) > 1 else set()
                if "saveexec" in op: W = W | {("s", "exec")}
        m = re.search(r";\s*junk\s+(.*)", line)
        if m:
            j = regs_of(m.group(1)); R = R - j
            if self.mfma: self.A = self.A - j; self.B = self.B - j
        m = re.search(r";\s*reads\s+(.*)", line)
        if m: R = R | regs_of(m.group(1))
        self.W = W; self.R = R
        self.states = 0 if op.endswith(":") else 1
        if op == "s_nop": self.states = int(ops[0], 0) + 1

def need(p, c):
    n = 0
    pv = {r for r in p.W if r[0] == "v"}
    ps = {r for r in p.W if r[0] == "s"}
    if p.mfma:
        if c.mfma:
            if pv & (c.A | c.B): n = max(n, {4: 8, 8: 12}[p.passes])
            if pv & c.C and not (pv == c.C and p.passes == c.passes): n = max(n, {4: 6, 8: 10}[p.passes])
            if pv & c.W and not (pv & c.C) : n = max(n, {4: 6, 8: 10}[p.passes])
        elif c.valu or c.vmem or c.ds:
            if pv & (c.R | c.W): n = max(n, {4: 8, 8: 12}[p.passes])
        if c.valu and (p.C & c.W): n = max(n, {4: 3, 8: 7}[p.passes])
        if (c.ds or c.vmem) and (p.C & c.W): n = max(n, {4: 3, 8: 7}[p.passes])
    if p.valu:
        if c.mfma and pv & c.R: n = max(n, 2)
        if c.mfma and ("s", "exec") in ps: n = max(n, 4)
        if p.trans and c.valu and not c.trans and pv & (c.R | c.W): n = max(n, 1)
        if p.trans and (c.vmem or c.ds) and pv & c.R: n = max(n, 1)
        if c.op.startswith("v_permlane") and pv & c.R: n = max(n, 2)
        if c.op.startswith(("v_readlane", "v_readfirstlane")) and pv & c.R: n = max(n, 1)
        if c.valu and ps & c.R: n = max(n, 2)
        if c.vmem and ps & c.R: n = max(n, 5)
        if c.salu and ps & c.R and not c.op.startswith("s_cbranch"): n = max(n, 0)
        if p.dot and c.valu and pv & (c.R | c.W) and c.op != p.op: n = max(n, 3)
        if p.dot and (c.vmem or c.ds or c.mfma) and pv & c.R: n = max(n, 3)
        if "dpp" in c.line or "row_" in c.line:
            if pv & c.R: n = max(n, 2)
        if ("op_sel" in p.line and not p.op.startswith("v_pk_")) and c.valu and pv & (c.R | c.W): n = max(n, 1)
    if p.salu and ("s", "m0") in ps and c.lds_dma: n = max(n, 1)
    if p.vmem and getattr(p, "wide_store", False):
        if c.valu and p.sdata & c.W: n = max(n, 2)
        elif p.sdata & c.W: n = max(n, 1)
    return n

def check_hazards(lines, window=24):
    ins = []; labels = {}
    for l in lines:
        code = l.split(";")[0].strip()
        if not code or code.startswith("."): continue
        if code.endswith(":"):
            labels[code[:-1]] = len(ins); continue
        ins.append(I(l.strip()))
    def succ(i):
        x = ins[i]
        if x.op == "s_endpgm": return []
        if x.op == "s_branch": return [labels[x.ops[0]]]
        r = [i + 1] if i + 1 < len(ins) else []
        if x.op.startswith("s_cbranch"): r.append(labels[x.ops[0]])
        if x.op == "s_call_b64": r.append(labels[x.ops[1]])
        if x.op == "s_setpc_b64": return []
        return r
    probs = []
    for i, p in enumerate(ins):
        if not (p.mfma or p.valu or p.salu or p.vmem): continue
        stack = [(j, 0) for j in succ(i)]
        seen = {}
        while stack:
            j, d = stack.pop()
            if d >= 20 or j >= len(ins): continue
            if seen.get(j, 99) <= d: continue
            seen[j] = d
            c = ins[j]
            n = need(p, c)
            if n > d:
                probs.append((i, j, n, d, p.line, c.line))
            for k in succ(j): stack.append((k, d + c.states))
    return probs

def _scc_w(x):
    return x.salu and x.op.startswith(("s_add", "s_sub", "s_cmp", "s_and", "s_or", "s_xor", "s_lshl", "s_lshr", "s_ashr", "s_min", "s_max", "s_not", "s_bfe", "s_andn2", "s_bitcmp"))
def _scc_r(x):
    return x.salu and x.op.startswith(("s_cselect", "s_addc", "s_subb", "s_cmov", "s_cbranch_scc"))

def issue_cost(x):
    if x.mfma or x.trans or "swap" in x.op: return 8
    if x.valu:
        return 5 if (x.op.startswith(("v_pk_", "v_cvt_pk", "v_max3", "v_min3", "v_fma", "v_add3", "v_lshl_", "v_mad", "v_bfe")) or "e64" in x.op or "0x" in x.line or "s[" in x.line) else 4
    return 4
def ds_busy(x):
    if "write_b128" in x.op: return 52
    if "write_b64" in x.op: return 30
    if "write" in x.op or "add" in x.op: return 16
    if "read_b128" in x.op: return 16
    return 14

def schedule(lines, prio=None, lgkm0=0, vm0=0, ds_lat=90, vm_lat=900, vm_gap=0, prev=(), verbose=False, inorder=False, ds_slack=24, ds_mul=1.0):
    N = len(lines)
    fence = [l.startswith("!") for l in lines]
    ins = [I(l.lstrip("!")) for l in lines]
    for x in ins:
        x.R = set(x.R); x.W = set(x.W)
        if x.valu or x.ds or x.vmem or x.mfma: x.R.add(("s", "exec"))
        if _scc_w(x): x.W.add(("s", "scc"))
        if _scc_r(x): x.R.add(("s", "scc"))
        if x.op.startswith("s_cbranch_vcc"): x.R.add(("s", "vcc"))
        if "dpp" in x.line and "bank_mask" in x.line: x.R |= {r for r in x.W if r[0] == "v"}
    preds = [dict() for _ in range(N)]
    def lat(p, c):
        if p.mfma:
            if c.mfma and {r for r in p.W} == c.C and not (p.W & (c.A | c.B)): return p.passes * 4
            return p.passes * 4 + 22
        if p.ds: return ds_lat
        if p.vmem: return vm_lat
        if p.trans: return 12
        return issue_cost(p)
    lastw = {}; readers = {}
    last_ds = None; last_vm = None; dsedge = {}
    for i, x in enumerate(ins):
        for r in x.R:
            if r in lastw:
                j = lastw[r]; preds[i][j] = max(preds[i].get(j, 0), lat(ins[j], x))
        for r in x.W:
            if r in lastw:
                j = lastw[r]; preds[i][j] = max(preds[i].get(j, 0), lat(ins[j], x) if (ins[j].ds or ins[j].vmem or ins[j].mfma) else 0)
            for j in readers.get(r, ()):
                if j != i: preds[i][j] = max(preds[i].get(j, 0), 0)
        isds = x.ds or (fence[i] and "lgkm" in x.line) or x.op == "s_barrier"
        isvm = x.vmem or (fence[i] and ("vmcnt" in x.line or "cbranch" in x.op)) or x.op == "s_barrier"
        if isds:
            if last_ds is not None: preds[i][last_ds] = max(preds[i].get(last_ds, 0), ds_lat if fence[i] else 0)
            if last_ds is not None and ins[last_ds].ds: dsedge[i] = last_ds
            last_ds = i
        if isvm:
            if last_vm is not None: preds[i][last_vm] = max(preds[i].get(last_vm, 0), vm_lat if (fence[i] and 'vmcnt' in x.line) else (0 if (fence[last_vm] or fence[i]) else vm_gap))
            last_vm = i
        for r in x.W:
            lastw[r] = i; readers[r] = []
        for r in x.R: readers.setdefault(r, []).append(i)
    succs = [[] for _ in range(N)]
    for i in range(N):
        for j, l in preds[i].items(): succs[j].append((i, l))
    height = [0] * N
    for i in reversed(range(N)):
        h = issue_cost(ins[i]) + (prio(lines[i], i) if prio else 0)
        for k, l in succs[i]: h = max(h, max(l, ds_busy(ins[i]) * ds_mul if dsedge.get(k) == i else 1) + height[k])
        height[i] = h
    schedule.times = []
    out = []; emitted = [I(l) for l in prev]
    done = [False] * N; tissue = [0] * N
    npred = [len(p) for p in preds]
    ready = [i for i in range(N) if npred[i] == 0]
    t = 0; mfree = -100; vfree = 0; dfree = 0; tdone = [0] * N
    dsq = []; vmq = []
    ds_done = 0; vm_done = 0
    def hz(c):
        d = 0; n = 0
        for p in reversed(emitted[-24:]):
            n = max(n, need(p, c) - d)
            d += p.states
            if d >= 20: break
        return n
    while ready:
        best = None
        for i in ready:
            x = ins[i]
            rt = max([(tdone[j] if l > 60 else tissue[j]) + l for j, l in preds[i].items()] + [0])
            if x.op.startswith("v_pk_") and "f32" in x.op: rt = max(rt, mfree + 10)
            if x.ds: rt = max(rt, dfree - ds_slack)
            if x.mfma: rt = max(rt, mfree)
            if x.vmem: rt = max(rt, vfree)
            rt = max(rt, t + 4 * hz(x))
            key = (max(rt - t, 0) > 3 and max(rt - t, 0), -height[i], i) if not inorder else (i,)
            if best is None or key < best[0]: best = (key, i, rt)
        _, i, rt = best
        x = ins[i]
        w = []
        nd = max([dsq.index(j) + 1 for j in preds[i] if ins[j].ds and (ins[j].W & (x.R | x.W))] + [0])
        if nd > ds_done:
            w.append(f"lgkmcnt({min(14, len(dsq) - nd)})"); ds_done = nd if len(dsq) - nd <= 14 else len(dsq) - 14
        nv = max([vmq.index(j) + 1 for j in preds[i] if ins[j].vmem and (ins[j].W & (x.R | x.W))] + [0])
        if nv > vm_done:
            w.append(f"vmcnt({len(vmq) - nv})"); vm_done = nv
        if w:
            l = "s_waitcnt " + " ".join(w); out.append(l); emitted.append(I(l)); t += 4
        n = hz(x)
        if n > 0:
            l = f"s_nop {n-1}"; out.append(l); emitted.append(I(l)); t += 4 * n
        t = max(t, rt)
        tissue[i] = t; tdone[i] = t
        if x.ds:
            tdone[i] = max(t, dfree); dfree = tdone[i] + ds_busy(x) * ds_mul
        out.append(x.line if not lines[i].startswith("!") else lines[i][1:]); emitted.append(x)
        schedule.times.append((len(out) - 1, t))
        if x.ds: dsq.append(i)
        if x.vmem: vmq.append(i); vfree = t + vm_gap
        if fence[i] and "vmcnt(0)" in x.line: vm_done = len(vmq)
        if fence[i] and "lgkmcnt(0)" in x.line: ds_done = len(dsq)
        if x.mfma: mfree = t + x.passes * 4
        t += issue_cost(x)
        done[i] = True; ready.remove(i)
        for k, l in succs[i]:
            npred[k] -= 1
            if npred[k] == 0: ready.append(k)
    assert all(done)
    if verbose: print(f"schedule: {N} instrs, modelled {t} cycles")
    return out
```

```python
import sys, struct, math
from asmlib import *

NAME = "gated_mix__linear_kernel_hedgehog__sliding_block__prompt_kernel"
def f2u(x): return struct.unpack("<I", struct.pack("<f", x))[0]
def fx(x): return hex(f2u(x))
LOG2E = math.log2(math.e)

SLOT = 47104; WOFF = 16384
RG = 51200
SCR = 153600; SCRW = 2560
LFLAG = 153584
F1A = 0x0; F1B = 0x1000; F2 = 0x2000; GATE = 0x8000
KVP = 0x10000; KVP_SZ = 1792
KVB = 0x100000; KVB_SZ = 10496; OB = 0x800000; DBG = 0x1000000
SPIN = 400000
OOB = 0x80000000

def acc(tt, ft): return 128 + ft * 32 + tt * 4
MF32 = "v_mfma_f32_32x32x16_bf16"; MF16 = "v_mfma_f32_16x16x32_bf16"

def sp(txt): return [l.strip() for l in txt.split("\n") if l.strip() and not l.strip().startswith(";")]

def gen(opt):
    A = Asm()
    prof = opt.get("prof", 0); sset = opt.get("sset", 0); vb = opt.get("verbose", 0)
    def st(k, ss=0): return [f"s_memtime s[{80+2*k}:{81+2*k}]"] if (prof and ss == sset) else []
    def stamp(k, ss=0):
        for l in st(k, ss): A(l)
    def emit(L):
        for l in L: A(l)
    def prevl(): return [l for l in A.lines[-24:] if not l.endswith(":")]
    def poll(tag, areg, soff, dreg):
        A("s_mov_b32 s29, 0")
        A.label(f"L_poll{tag}")
        A(f"""
        buffer_load_dword v{dreg}, v{areg}, {soff} offen sc1
        s_add_u32 s29, s29, 1
        s_cmp_ge_u32 s29, {SPIN}
        s_cbranch_scc1 L_go{tag}
        s_waitcnt vmcnt(0)
        v_cmp_eq_u32 vcc, 0, v{dreg}
        s_nop 1
        s_cmp_lg_u64 vcc, 0
        s_cbranch_scc1 L_poll{tag}
        """)
        A.label(f"L_go{tag}")
    A(f"""
    s_cmp_ge_u32 s2, 256
    s_cbranch_scc1 L_end
    s_load_dwordx8 s[36:43], s[0:1], 0
    s_load_dwordx8 s[44:51], s[0:1], 40
    s_load_dwordx4 s[52:55], s[0:1], 72
    """)
    if prof: A("s_memtime s[80:81]\ns_memrealtime s[98:99]")
    A(f"""
    v_lshrrev_b32 v1, 6, v0
    v_and_b32 v0, 63, v0
    s_and_b32 s20, s2, 7
    v_readfirstlane_b32 s25, v1             ; wave
    s_lshr_b32 s21, s2, 3
    s_and_b32 s26, s21, 7
    s_and_b32 s22, s20, 1
    s_lshl_b32 s22, s22, 3
    s_add_u32 s22, s22, s26                 ; rb
    s_lshr_b32 s27, s21, 3
    """)
    if opt["map"] == 1:
        A("""
        s_lshr_b32 s23, s20, 2                  ; br
        s_bfe_u32 s24, s20, 0x10001
        s_lshl_b32 s24, s24, 2
        s_add_u32 s24, s24, s27                 ; hg
        """)
    else:
        A("""
        s_and_b32 s23, s27, 1                   ; br
        s_and_b32 s24, s20, 6
        s_lshr_b32 s28, s27, 1
        s_add_u32 s24, s24, s28                 ; hg
        """)
    A(f"""
    s_mov_b32 s6, 2621440
    s_mov_b32 s7, 0x20000
    s_mov_b32 s14, 0x10000000
    s_mov_b32 s15, 0x20000
    s_mov_b32 s19, 0x20000
    s_lshl_b32 s56, s20, 2
    s_add_u32 s56, s56, s27
    s_mov_b32 s57, s26
    """)
    duty = opt.get("touch") == 3
    D0 = opt.get("d0", 3); DL = opt.get("dl", 3)
    def duty_srd(): return sp("""
        s_cmp_lt_u32 s33, 62
        s_cselect_b32 s72, s38, s44
        s_cselect_b32 s73, s39, s45
        s_cmp_lt_u32 s33, 32
        s_cselect_b32 s72, s36, s72
        s_cselect_b32 s73, s37, s73
        """) if duty else []
    if duty:
        A(f"""
        s_mul_i32 s3, s2, 2850
        s_lshr_b32 s3, s3, 16                   ; d = wg / 23
        s_mul_i32 s28, s3, 23
        s_sub_u32 s28, s2, s28
        s_and_b32 s29, s25, 3
        s_lshl_b32 s28, s28, 2
        s_add_u32 s33, s28, s29                 ; idx 0..91
        s_cmp_lt_u32 s33, 62
        s_cselect_b32 s28, 32, 62
        s_sub_u32 s28, s33, s28
        s_lshl_b32 s28, s28, 13
        s_mul_i32 s29, s3, 245760
        s_add_u32 s28, s28, s29
        s_mul_i32 s29, s33, {64*1280}
        s_lshl_b32 s30, s3, 7
        s_add_u32 s29, s29, s30
        s_cmp_lt_u32 s33, 32
        s_cselect_b32 s70, s29, s28
        s_movk_i32 s29, 1280
        s_cselect_b32 s71, s29, 128
        s_mov_b32 s30, 2621440
        s_cselect_b32 s74, s30, 2457600
        s_mov_b32 s75, 0x20000
        v_mul_u32_u24 v13, s71, v0
        """)
    A("s_cmp_lt_u32 s25, 4\ns_cbranch_scc1 L_cons")
    rot = opt["rot"]
    if rot == 0: A("s_mov_b32 s64, 0")
    elif rot == 2: A("s_add_u32 s64, s26, s27\ns_and_b32 s64, s64, 1\ns_mul_i32 s64, s64, 5")
    elif rot == 4: A("s_add_u32 s64, s26, s27\ns_and_b32 s64, s64, 3\ns_mul_i32 s64, s64, 5\ns_lshr_b32 s64, s64, 1")
    elif rot == 8: A("s_lshl_b32 s64, s27, 1\ns_add_u32 s64, s26, s64\ns_and_b32 s64, s64, 7\ns_mul_i32 s64, s64, 5\ns_lshr_b32 s64, s64, 2")
    elif rot == 5: A("s_add_u32 s64, s26, s27\ns_mul_i32 s28, s64, 52\ns_lshr_b32 s28, s28, 8\ns_mul_i32 s28, s28, 5\ns_sub_u32 s64, s64, s28\ns_lshl_b32 s64, s64, 1")
    xsh = opt.get("xsh", 0)
    if xsh == 1:
        A("s_lshr_b32 s28, s20, 1\ns_xor_b32 s28, s28, s20\ns_and_b32 s28, s28, 1\ns_lshr_b32 s29, s20, 2\ns_lshl_b32 s29, s29, 1\ns_add_u32 s28, s28, s29")
    elif xsh == 2:
        A("s_lshr_b32 s28, s20, 1\ns_and_b32 s29, s20, 1\ns_lshl_b32 s29, s29, 1\ns_add_u32 s28, s28, s29")
    elif xsh == 3:
        A("s_lshr_b32 s28, s20, 1\ns_mul_i32 s28, s28, 5\ns_lshr_b32 s28, s28, 1\ns_and_b32 s29, s20, 1\ns_mul_i32 s29, s29, 5\ns_add_u32 s28, s28, s29\ns_cmp_ge_u32 s28, 10\ns_cselect_b32 s29, 10, 0\ns_sub_u32 s28, s28, s29")
    if xsh: A("s_add_u32 s64, s64, s28\ns_cmp_ge_u32 s64, 10\ns_cselect_b32 s29, 10, 0\ns_sub_u32 s64, s64, s29")
    A(f"""
    s_sub_u32 s35, s25, 4                   ; w
    v_lshrrev_b32 v1, 3, v0
    s_lshl_b32 s28, s22, 7
    s_lshl_b32 s29, s35, 3
    s_add_u32 s28, s28, s29
    v_add_u32 v1, s28, v1
    v_mul_u32_u24 v1, 1280, v1
    s_and_b32 s29, s35, 1
    s_lshl_b32 s28, s29, 2
    v_lshrrev_b32 v3, 4, v0
    v_add_u32 v3, s28, v3
    v_xor_b32 v3, v3, v0
    v_and_b32 v3, 7, v3
    v_lshl_add_u32 v1, v3, 4, v1            ; x voffset
    v_cmp_le_u32 vcc, 30, v0
    v_subrev_u32 v4, 30, v0
    v_mov_b32 v5, {8*3840}
    v_cndmask_b32 v4, v0, v4, vcc           ; rem
    v_cndmask_b32 v5, 0, v5, vcc
    v_mul_u32_u24 v6, 26, v4
    v_lshrrev_b32 v6, 8, v6                 ; part
    v_mul_u32_u24 v6, {1280-160}, v6
    v_lshl_add_u32 v4, v4, 4, v6
    s_mul_i32 s28, s24, 160
    s_mul_i32 s29, s35, 3840
    s_add_u32 s28, s28, s29
    v_add3_u32 v2, v4, v5, s28              ; W voffset
    s_mov_b32 s10, 2457600
    s_mov_b32 s11, 0x20000
    s_mov_b32 s60, -1
    s_mov_b32 s61, 0x0fffffff
    s_lshl_b32 s62, s35, 10                 ; x m0 base
    s_mul_i32 s63, s35, 960
    s_add_u32 s63, s63, {WOFF}              ; W m0 base
    s_mov_b32 s65, 0
    s_mov_b32 s31, -1
    s_cmp_eq_u32 s23, 0
    s_waitcnt lgkmcnt(0)
    s_mov_b32 s4, s36
    s_mov_b32 s5, s37
    s_cselect_b32 s8, s38, s44
    s_cselect_b32 s9, s39, s45
    """)
    if duty:
        emit(duty_srd())
        A(f"s_cmp_gt_u32 s3, {D0}\ns_cbranch_scc1 L_h_head\nbuffer_load_dword v13, v13, s[72:75], s70 offen")
    A("s_branch L_h_head")
    lam = opt.get("lam", 6)
    nW = lam - 4
    assert 0 <= nW <= 8
    def wdma(u):
        A("buffer_load_dwordx4 v2, s[8:11], s67 offen lds")
        if u < 7: A(f"s_add_u32 m0, m0, 3840\ns_add_u32 s67, s67, {(4 if u%2==0 else 12)*3840}")
    A.label("L_h_loop")
    for u in range(nW, 8): wdma(u)
    A(f"""
    s_add_u32 s64, s64, 1
    s_cmp_eq_u32 s64, 10
    s_cselect_b32 s64, 0, s64
    s_add_u32 s65, s65, {SLOT}
    s_cmp_eq_u32 s65, {3*SLOT}
    s_cselect_b32 s65, 0, s65
    """)
    A.label("L_h_head")
    A("""
    s_mov_b64 exec, -1
    s_lshl_b32 s66, s64, 7
    s_add_u32 m0, s62, s65
    s_mul_i32 s67, s64, 245760
    """)
    for i in range(4):
        A("buffer_load_dwordx4 v1, s[4:7], s66 offen lds")
        if i < 3: A(f"s_add_u32 m0, m0, 4096\ns_add_u32 s66, s66, {32*1280}")
    A("s_add_u32 m0, s63, s65\ns_mov_b64 exec, s[60:61]")
    for u in range(nW): wdma(u)
    A(f"""
    s_add_u32 s31, s31, 1
    s_cmp_eq_u32 s31, 0
    s_cbranch_scc1 L_h_loop
    s_waitcnt vmcnt({lam})
    s_barrier
    s_cmp_lt_u32 s31, 9
    s_cbranch_scc1 L_h_loop
    """)
    for u in range(nW, 8): wdma(u)
    A(f"""
    s_mov_b64 exec, -1
    s_waitcnt vmcnt(4)
    s_barrier
    s_mov_b32 s12, s54
    s_mov_b32 s13, s55
    s_lshr_b32 s28, s35, 1
    s_cmp_eq_u32 s28, 0
    s_cselect_b32 s16, s42, s46
    s_cselect_b32 s17, s43, s47
    s_mov_b32 s18, 819200
    s_waitcnt vmcnt(0)
    s_barrier                               ; b9b
    v_mul_u32_u24 v4, 26, v0
    v_lshrrev_b32 v4, 8, v4
    v_mul_u32_u24 v4, {1280-160}, v4
    v_lshl_add_u32 v4, v0, 4, v4
    s_mul_i32 s28, s57, 160
    s_and_b32 s29, s35, 1
    s_mul_i32 s29, s29, {80*1280}
    s_add_u32 s28, s28, s29
    v_add_u32 v1, s28, v4
    s_mul_i32 s62, s35, 12800
    s_mov_b32 s61, 0x0003ffff               ; 50 lanes
    s_add_u32 s35, s57, s56
    v_mov_b32 v8, {LFLAG}
    v_mov_b32 v10, 1
    v_bfrev_b32 v14, 1
    v_mov_b32 v15, 0
    s_barrier
    """)
    thr = opt.get("thr", 6)
    def wo_group(G, region, first=0, last=16, tag=""):
        A(f"""
        s_add_u32 s28, s35, {G}
        s_and_b32 s28, s28, 3
        s_mul_i32 s75, s28, {160*1280}
        s_add_u32 s75, s75, {first*5*1280}
        s_add_u32 m0, s62, {region*RG + first*800}
        s_mov_b64 exec, s[60:61]
        s_mov_b32 s31, {first}
        """)
        A.label(f"L_wo{G}{tag}")
        A(f"buffer_load_dwordx4 v1, s[16:19], s75 offen lds\ns_add_u32 m0, m0, 800\ns_add_u32 s75, s75, {5*1280}")
        if thr and G < 3 and not tag: A(f"s_waitcnt vmcnt({thr-1})")
        A(f"s_add_u32 s31, s31, 1\ns_cmp_lt_u32 s31, {last}\ns_cbranch_scc1 L_wo{G}{tag}\ns_mov_b64 exec, -1")
    def lwait(tag, off, bound_shift):
        A("s_mov_b32 s29, 0")
        A.label(f"L_lw{tag}")
        A(f"""
        ds_read_b32 v9, v8 offset:{off}
        s_add_u32 s29, s29, 1
        s_lshr_b32 s31, s29, {bound_shift}
        s_waitcnt lgkmcnt(0)
        v_readfirstlane_b32 s28, v9
        s_max_u32 s28, s28, s31
        s_cmp_ge_u32 s28, 4
        s_cbranch_scc1 L_lg{tag}
        s_sleep 2
        s_branch L_lw{tag}
        """)
        A.label(f"L_lg{tag}")
    wa = opt.get("w3a", 2); wb = opt.get("w3b", 0)
    for G in range(3):
        if G == wa and G == wb: lwait(f"h{G}", 0, 8)
        elif G == wa or G == wb:
            A(f"s_cmp_eq_u32 s23, {1 if G == wa else 0}\ns_cbranch_scc1 L_lgh{G}")
            lwait(f"h{G}", 0, 8)
        wo_group(G, G, 0, 16 if G < 2 else 15)
        if G == 1: A("s_waitcnt vmcnt(0)\ns_mov_b64 exec, 1\nds_add_u32 v8, v10 offset:4\ns_mov_b64 exec, -1")
    A("s_branch L_P3pre")

    A.label("L_side")
    A("""
    s_waitcnt vmcnt(0)
    s_cmp_lg_u32 s31, s35
    s_cbranch_scc1 L_side2
    s_lshl_b32 s28, s2, 2
    s_mov_b64 exec, 1
    buffer_store_dword v15, v0, s[16:19], s28 offen sc1
    s_mov_b64 exec, -1
    """)
    A.label("L_side2")
    if duty:
        A("""
        s_cmp_lg_u32 s31, s3
        s_cbranch_scc1 L_side3
        v_mul_u32_u24 v13, s71, v0
        buffer_load_dword v13, v13, s[72:75], s70 offen
        """)
        A.label("L_side3")
    A("""
    s_cmp_lg_u32 s31, 7
    s_cbranch_scc1 L_back
    v_and_b32 v13, 7, v0
    v_lshlrev_b32 v13, 2, v13
    buffer_load_dword v13, v13, s[16:19], 0 offen sc1
    s_branch L_back
    """)
    A.label("L_cons")
    A(f"""
    s_setprio 1
    s_lshl_b32 s58, s24, 2
    s_add_u32 s58, s58, s25                 ; head
    s_lshl_b32 s28, s23, 5
    s_add_u32 s59, s28, s58
    v_lshrrev_b32 v65, 5, v0                ; h
    v_and_b32 v64, 31, v0                   ; i
    v_lshlrev_b32 v1, 4, v0
    s_mov_b32 s10, 1280
    s_mov_b32 s11, 0x20000
    s_mov_b32 s34, {SLOT}
    s_waitcnt lgkmcnt(0)
    s_mov_b32 s4, s36
    s_mov_b32 s5, s37
    s_mov_b32 s12, s54
    s_mov_b32 s13, s55
    s_mov_b32 s8, s48                       ; s[8:11] = gate_w
    s_mov_b32 s9, s49
    """)
    emit(duty_srd())
    A(f"""
    s_cmp_lg_u32 s25, 3
    s_cbranch_scc1 L_nogt
    v_lshlrev_b32 v57, 7, v0
    buffer_load_dword v13, v57, s[8:11], 0 offen
    """)
    A.label("L_nogt")
    if opt.get("touch") == 2:
        m1 = opt["map"] == 1
        Bn = 5 if m1 else 3; An = 3 * Bn; Nn = 75 if m1 else 90
        A(f"""
        s_cmp_ge_u32 s25, 2
        s_cbranch_scc1 L_tx
        s_cmp_eq_u32 {'s23' if m1 else 's25'}, 0
        s_cselect_b32 s16, s38, s44
        s_cselect_b32 s17, s39, s45
        s_mov_b32 s18, 2457600
        s_and_b32 s28, s20, 1
        s_lshl_b32 s28, s28, 5
        s_add_u32 s28, s28, s21
        s_mul_i32 s28, s28, 38400
        """)
        if m1: A("s_mul_i32 s29, s25, 19200\ns_add_u32 s28, s28, s29\ns_bfe_u32 s29, s20, 0x10001\ns_mul_i32 s29, s29, 640\ns_add_u32 s28, s28, s29")
        else: A("s_lshr_b32 s29, s20, 1\ns_mul_i32 s29, s29, 5\ns_lshr_b32 s29, s29, 1\ns_lshl_b32 s29, s29, 7\ns_add_u32 s28, s28, s29")
        for rd in range(2):
            A(f"""
            v_add_u32 v57, {64*rd}, v0
            v_min_u32 v57, {Nn-1}, v57
            v_mul_u32_u24 v58, {65536//Bn+1}, v57
            v_lshrrev_b32 v58, 16, v58
            v_mul_u32_u24 v59, {1280-128*Bn}, v58
            v_lshl_add_u32 v57, v57, 7, v59
            buffer_load_dword v13, v57, s[16:19], s28 offen
            """)
        A("s_branch L_tdone")
        A.label("L_tx")
        A(f"""
        s_cmp_lg_u32 s25, 2
        s_cbranch_scc1 L_tdone
        s_and_b32 s28, s20, 1
        s_lshl_b32 s28, s28, 2
        s_lshr_b32 s29, s20, 1
        s_add_u32 s28, s28, s29
        s_lshl_b32 s28, s28, 5
        s_add_u32 s28, s28, s21
        s_mul_i32 s28, s28, 10240
        v_lshlrev_b32 v57, 7, v0
        buffer_load_dword v13, v57, s[4:7], s28 offen
        v_min_u32 v57, 0x780, v57
        s_add_u32 s28, s28, 8192
        buffer_load_dword v13, v57, s[4:7], s28 offen
        """)
        A.label("L_tdone")
    if rot == 5 and opt.get("touch", 1) == 1:
        A(f"""
        s_cmp_lg_u32 s25, 1
        s_cbranch_scc1 L_notouch
        s_add_u32 s28, s26, 4
        s_mul_i32 s29, s28, 52
        s_lshr_b32 s29, s29, 8
        s_mul_i32 s29, s29, 5
        s_sub_u32 s28, s28, s29
        s_lshl_b32 s28, s28, 8
        s_lshl_b32 s29, s22, 7
        s_lshl_b32 s31, s27, 5
        s_add_u32 s29, s29, s31
        v_lshrrev_b32 v57, 1, v0
        v_add_u32 v57, s29, v57
        v_mul_u32_u24 v57, 1280, v57
        v_and_b32 v58, 1, v0
        v_lshl_add_u32 v57, v58, 7, v57
        buffer_load_dword v13, v57, s[4:7], s28 offen
        """)
        A.label("L_notouch")
    if opt.get("cpf", 1):
        A.label("L_cpf")
        A(f"""
        s_getpc_b64 s[28:29]
        s_cmp_lg_u32 s25, 3
        s_cbranch_scc1 L_nocpf
        s_and_b32 s31, s21, 3
        s_lshl_b32 s31, s31, 13
        v_lshl_add_u32 v57, v0, 7, s31
        v_min_u32 v57, L_end-L_cpf, v57
        global_load_dword v13, v57, s[28:29]
        """)
        A.label("L_nocpf")
    A(f"""
    s_lshl_b32 s28, s25, 8
    s_or_b32 s33, s28, s2
    s_cmp_ge_u32 s33, 8
    s_cbranch_scc1 L_noinit
    v_mov_b32 v60, 0
    v_mov_b32 v61, 0
    v_mov_b32 v62, 0
    v_mov_b32 v63, 0
    s_mul_i32 s28, s2, 3072
    buffer_store_dwordx4 v[60:63], v1, s[12:15], s28 offen sc1
    buffer_store_dwordx4 v[60:63], v1, s[12:15], s28 offen offset:1024 sc1
    buffer_store_dwordx4 v[60:63], v1, s[12:15], s28 offen offset:2048 sc1
    """)
    A.label("L_noinit")
    A(f"""
    s_mov_b32 s60, -1
    s_mov_b32 s61, 0
    v_bfrev_b32 v71, 1                      ; OOB
    v_cndmask_b32 v2, v71, v1, s[60:61]
    s_mul_i32 s28, s25, {SCRW}
    s_add_u32 s62, s28, {SCR}
    v_mul_u32_u24 v3, 48, v64
    v_add_u32 v3, s62, v3
    v_lshlrev_b32 v66, 3, v65
    v_sub_u32 v4, v3, v66
    v_add_u32 v4, 40, v4
    v_lshl_add_u32 v3, v65, 4, v3
    v_bfe_u32 v69, v0, 2, 2                 ; r
    v_lshl_add_u32 v69, v65, 2, v69
    v_bfe_u32 v70, v0, 4, 1
    v_and_b32 v66, 3, v0
    v_lshl_add_u32 v70, v70, 2, v66         ; sg = 4a + c
    v_min_u32 v66, 5, v70
    v_lshlrev_b32 v66, 3, v66
    v_mul_u32_u24 v5, 48, v69
    v_add3_u32 v5, v5, v66, s62
    v_mov_b32 v15, 0x3f803f80
    s_cmp_lg_u32 s25, 0
    s_cbranch_scc1 L_nolf
    v_mov_b32 v72, {LFLAG}
    v_mov_b32 v74, 0
    v_mov_b32 v75, 0
    ds_write_b64 v72, v[74:75]
    """)
    A.label("L_nolf")
    cs = (20 ** -0.5) * LOG2E
    A(f"""
    s_cmp_eq_u32 s23, 0
    s_cbranch_scc1 L_preA
    v_lshlrev_b32 v66, 2, v65
    v_sub_u32 v66, v64, v66                 ; i - 4h
    v_mov_b32 v67, 0xff800000
    v_mov_b32 v68, 0
    """)
    for vv in range(16):
        kk = 8 * (vv >> 2) + (vv & 3)
        A(f"v_cmp_le_i32 vcc, {kk}, v66\ns_nop 1\nv_cndmask_b32 v{16+vv}, v67, v68, vcc")
    A(f"""
    v_bfe_u32 v66, v0, 4, 1
    v_mov_b32 v14, {fx(cs)}
    v_cndmask_b32 v14, 0, v14, s[60:61]
    v_cmp_eq_u32 vcc, 1, v66
    s_mov_b32 s64, {fx(cs)}
    s_mov_b32 s65, {fx(cs)}
    v_cndmask_b32_e64 v14, v14, 1.0, vcc
    v_min_u32 v6, 20, v64
    v_mad_u32_u24 v6, v65, 21, v6
    v_cmp_ge_u32 vcc, 20, v64
    v_lshlrev_b32 v6, 4, v6
    s_lshl_b32 s28, s58, 4
    v_cndmask_b32 v7, v71, v6, vcc
    s_add_u32 s28, s28, s22
    s_mul_i32 s66, s28, {KVB_SZ}
    s_add_u32 s66, s66, {KVB}
    s_add_u32 s67, s66, 4096
    s_add_u32 s68, s66, 5120
    s_add_u32 s69, s66, {5120+4*672}
    s_lshl_b32 s28, s58, 7
    s_lshl_b32 s29, s22, 2
    s_add_u32 s28, s28, s29
    s_add_u32 s63, s28, {F1B}
    s_branch L_preDone
    """)
    A.label("L_preA")
    A(f"""
    v_lshrrev_b32 v66, 3, v64               ; q
    v_bfe_u32 v67, v64, 2, 1                ; h'
    v_and_b32 v68, 3, v64                   ; r
    v_lshl_add_u32 v72, v66, 2, v68         ; vv = 4q+r
    v_mul_u32_u24 v73, 10, v67
    v_add_u32 v73, v73, v72                 ; f
    v_lshlrev_b32 v73, 1, v73
    s_mul_i32 s28, s58, 800
    v_add_u32 v73, s28, v73
    v_cmp_gt_u32 vcc, 10, v72
    v_mul_u32_u24 v58, 320, v65
    s_mov_b32 s16, s40
    v_cndmask_b32 v73, v71, v73, vcc
    v_add_u32 v58, v58, v73
    s_mov_b32 s17, s41
    v_cndmask_b32 v73, v71, v73, s[60:61]
    s_mov_b32 s18, 25600
    v_mov_b32 v22, 0
    v_mov_b32 v23, 0
    """)
    for j in range(8):
        A(f"buffer_load_ushort v{(24 if j&1 else 16)+(j>>1)}, v58, s[16:19], 0 offen offset:{j*40}")
    for j in range(4):
        A(f"buffer_load_ushort v{(28 if j&1 else 20)+(j>>1)}, v73, s[16:19], 0 offen offset:{(16+j)*40}")
    A(f"""
    v_mov_b32 v57, 99
    v_cmp_eq_u32 vcc, v65, v67
    v_and_b32 v30, 1, v72
    v_lshlrev_b32 v30, 4, v30
    v_cndmask_b32 v72, v57, v72, vcc
    v_mov_b32 v57, 0x3f80
    v_lshlrev_b32 v30, v30, v57
    v_lshrrev_b32 v31, 1, v72
    """)
    A(f"""
    s_mov_b32 s64, {fx(LOG2E)}
    s_mov_b32 s65, {fx(LOG2E)}
    v_mul_u32_u24 v6, 80, v64
    v_mul_u32_u24 v66, 40, v65
    v_add3_u32 v6, v6, v66, s62
    v_and_b32 v66, 1, v70                   ; h'
    v_mul_u32_u24 v66, 40, v66
    v_mul_u32_u24 v14, 80, v69
    v_add3_u32 v14, v14, v66, s62
    v_lshrrev_b32 v66, 1, v70               ; q
    v_lshl_add_u32 v7, v66, 3, v14
    s_lshl_b32 s28, s58, 4
    s_mul_i32 s66, s28, {KVP_SZ}
    s_add_u32 s66, s66, {KVP}
    s_mul_i32 s67, s22, {KVP_SZ}
    s_add_u32 s67, s67, s66
    s_lshl_b32 s28, s58, 7
    s_add_u32 s68, s28, {F1A}
    s_lshl_b32 s29, s22, 2
    s_add_u32 s63, s68, s29
    """)
    A.label("L_preDone")
    A(f"""
    v_and_b32 v64, 15, v0                   ; i16
    v_lshrrev_b32 v65, 4, v0                ; g
    v_bfe_u32 v66, v0, 1, 3
    v_xor_b32 v66, v66, v65
    v_lshlrev_b32 v66, 4, v66
    v_lshl_add_u32 v8, v64, 7, v66
    v_xor_b32 v9, 64, v8
    v_bfe_u32 v66, v0, 2, 2                 ; r
    v_lshlrev_b32 v66, 1, v66
    v_bfe_u32 v67, v0, 4, 1
    v_add_u32 v66, v66, v67
    v_lshrrev_b32 v67, 5, v0
    v_lshl_add_u32 v66, v67, 4, v66         ; 16*(g>>1) + 2r + (g&1)
    v_mul_u32_u24 v66, 480, v66
    s_mul_i32 s28, s25, 40
    s_add_u32 s28, s28, {WOFF}
    v_add_u32 v66, s28, v66
    v_and_b32 v68, 3, v0                    ; c
    v_lshl_add_u32 v10, v68, 3, v66
    v_and_b32 v67, 1, v68
    v_lshrrev_b32 v68, 1, v68
    v_add_u32 v68, 1, v68
    v_mul_u32_u24 v68, v68, v67
    v_mul_u32_u24 v68, 160, v68
    v_add3_u32 v11, v68, v66, 32
    s_lshl_b32 s29, s22, 7
    s_add_u32 s28, s59, s29
    s_mul_i32 s28, s28, 2560
    s_add_u32 s76, s28, {OB}
    s_add_u32 s77, s76, {64*2560}
    s_and_b32 s29, s59, 7
    s_lshl_b32 s29, s29, 2
    s_lshr_b32 s28, s59, 3
    s_lshl_b32 s28, s28, 7
    s_add_u32 s28, s28, s29
    s_lshl_b32 s29, s22, 10
    s_add_u32 s28, s28, s29
    s_add_u32 s78, s28, {F2}
    """)
    for r in range(128): A(f"v_mov_b32 v{128+r}, 0")
    A(f"""
    s_mov_b32 s16, s52
    s_mov_b32 s17, s53
    s_mov_b32 s18, 32
    s_cmp_lt_u32 s33, 8
    s_cselect_b32 s35, 1, 20
    s_movk_i32 s79, 0x80
    s_bitset1_b32 s79, s35
    """)
    if duty:
        assert 9 - DL < 7
        A(f"""
        s_sub_u32 s28, s3, {D0+1}
        s_sub_u32 s3, s3, {DL}
        s_max_i32 s3, s3, 0
        s_cmp_lt_u32 s28, {9-D0}
        s_cselect_b32 s3, s3, 21
        s_bitset1_b32 s79, s3
        """)
    def gate_loads(b):
        return sp(f"""
        s_lshl_b32 s28, s59, 1
        s_lshl_b32 s30, s22, 7
        s_add_u32 s28, s28, s30
        v_lshrrev_b32 v{b+24}, 5, v0
        v_add_u32 v{b+24}, s28, v{b+24}
        v_and_b32 v{b+25}, 0x1f0, v1
        v_mul_u32_u24 v{b+26}, 1280, v{b+24}
        v_add_u32 v{b+26}, v{b+26}, v{b+25}
        """) + [f"buffer_load_dwordx4 {v(b+4*n,4)}, v{b+26}, s[4:7], 0 offen offset:{512*n}" for n in range(3)] \
             + [f"buffer_load_dwordx4 {v(b+12+4*n,4)}, v{b+25}, s[8:11], 0 offen offset:{512*n}" for n in range(3)]
    def gate_fin(b):
        a = b + 25
        L = [f"v_mov_b32 v{a}, 0", f"v_mov_b32 v{a+1}, 0", f"v_lshlrev_b32 v{b+24}, 2, v{b+24}"]
        L += [f"v_dot2c_f32_bf16 v{a+(r&1)}, v{b+r}, v{b+12+r}" for r in range(12)]
        L += sp(f"""
        v_add_f32 v{a}, v{a}, v{a+1}
        v_add_f32_dpp v{a}, v{a}, v{a} quad_perm:[1,0,3,2] row_mask:0xf bank_mask:0xf
        v_add_f32_dpp v{a}, v{a}, v{a} quad_perm:[2,3,0,1] row_mask:0xf bank_mask:0xf
        v_add_f32_dpp v{a}, v{a}, v{a} row_half_mirror row_mask:0xf bank_mask:0xf
        v_add_f32_dpp v{a}, v{a}, v{a} row_mirror row_mask:0xf bank_mask:0xf
        v_mov_b32 v{a+1}, v{a}
        v_permlane16_swap_b32 v{a}, v{a+1}
        v_add_f32 v{a}, v{a}, v{a+1}
        v_mul_f32 v{a}, {fx(-LOG2E)}, v{a}
        v_exp_f32 v{a}, v{a}
        v_add_f32 v{a}, 1.0, v{a}
        v_rcp_f32 v{a}, v{a}
        s_mov_b32 s30, {GATE}
        buffer_store_dword v{a}, v{b+24}, s[12:15], s30 offen sc1
        """)
        return L
    XB = [32, 64]; WB = [96, 112]
    def wr(st_, buf):
        return [f"ds_read_b64_tr_b16 {v(WB[buf]+4*ft+2*jj,2)}, v{10+(ft==3)} offset:{(32*st_+8*jj)*480 + (160*ft if ft<3 else 0)}" for ft in range(4) for jj in range(2)]
    def xr(st_, buf):
        return [f"ds_read_b128 {v(XB[buf]+4*tt,4)}, v{8+st_} offset:{tt*2048}" for tt in range(8)]
    def reads(st_, buf):
        X = xr(st_, buf); return [X[0]] + wr(st_, buf) + X[1:]
    def mf(buf, tt, ft): return f"{MF16} {v(acc(tt,ft),4)}, {v(WB[buf]+4*ft,4)}, {v(XB[buf]+4*tt,4)}, {v(acc(tt,ft),4)}"
    def mfmas(buf): return [mf(buf, tt, ft if tt % 2 == 0 else 3 - ft) for tt in range(8) for ft in range(4)]
    A("s_mov_b32 s31, 0\ns_mov_b32 s32, 0\ns_waitcnt lgkmcnt(0)\ns_barrier")
    rts = prof and sset == 4
    if rts: A("s_memrealtime s[82:83]")
    emit(reads(0, 0))
    A.label("L_c_loop")
    for st_ in range(2):
        M = mfmas(st_); R = reads(st_ ^ 1, st_ ^ 1)
        A("s_waitcnt lgkmcnt(0)")
        if st_ == 0:
            if rts: A("s_mov_b32 m0, s31\nv_writelane_b32 v12, s82, m0")
            for n in range(32):
                A(M[n])
                if n < 16: A(R[n])
                if n == 20:
                    A("s_bitcmp1_b32 s79, s31\ns_cbranch_scc1 L_side"); A.label("L_back")
        else:
            A(M[0]); A("s_add_u32 s32, s32, 1\ns_cmp_eq_u32 s32, 3")
            A(M[1]); A(f"s_cselect_b32 s33, {-2*SLOT & 0xffffffff}, s34\ns_cselect_b32 s32, 0, s32")
            A(M[2])
            for r in range(8, 12):
                A(f"v_add_u32 v{r}, s33, v{r}"); A(M[r-5])
            A("s_barrier")
            if rts: A("s_memrealtime s[82:83]")
            for n in range(7, 32):
                if n - 7 < 16: A(R[n-7])
                A(M[n])
                if n == 29: A("s_add_u32 s31, s31, 1\ns_cmp_lt_u32 s31, 9")
            A("s_cbranch_scc1 L_c_loop")
    M = mfmas(0); X = xr(1, 1); W = wr(1, 1)
    A("s_waitcnt lgkmcnt(0)")
    if rts:
        A(f"""
        v_writelane_b32 v12, s82, 9
        v_writelane_b32 v12, s82, 10
        v_writelane_b32 v12, s82, 11
        v_writelane_b32 v12, s98, 12
        s_lshl_b32 s28, s2, 2
        s_add_u32 s28, s28, s25
        s_lshl_b32 s28, s28, 8
        s_add_u32 s28, s28, {DBG+0x100000}
        v_lshlrev_b32 v8, 2, v0
        buffer_store_dword v12, v8, s[12:15], s28 offen
        s_nop 1
        """)
    nb = opt.get("b9pos", 16)
    for n in range(32):
        A(M[n])
        if n < 8: A(X[n])
        if n == nb: A("s_barrier                               ; b9b")
        if nb <= n < nb + 8: A(W[n - nb])
    A("""
    s_waitcnt vmcnt(0) lgkmcnt(0)
    s_barrier
    v_cmp_eq_u32 vcc, 0, v13
    s_nop 0
    s_cbranch_vccz L_goI
    v_and_b32 v12, 7, v0
    v_lshlrev_b32 v12, 2, v12
    """)
    poll("I", 12, "s[16:19], 0", 13)
    stamp(1); stamp(1, 2)
    A("s_cmp_eq_u32 s23, 0\ns_cbranch_scc1 L_A")

    def conv(t, ft, da, db):
        a = acc(2*t, ft); b = acc(2*t+1, ft)
        return [f"v_cvt_pk_bf16_f32 v{da}, v{a}, v{a+1}", f"v_cvt_pk_bf16_f32 v{db}, v{b}, v{b+1}",
                f"v_cvt_pk_bf16_f32 v{da+1}, v{a+2}, v{a+3}", f"v_cvt_pk_bf16_f32 v{db+1}, v{b+2}, v{b+3}",
                f"v_permlane16_swap_b32 v{da}, v{db}", f"v_permlane16_swap_b32 v{da+1}, v{db+1}"]
    lastk = [mf(1, tt, ft) for tt in range(8) for ft in (3, 2, 1)] + [mf(1, tt, 0) for tt in range(8)]
    K1 = [32 + 4*u for u in range(4)]
    K2d = [48 + 2*u for u in range(4)]
    def vrows(q, l, k2):
        return [f"v_cndmask_b32 v{l}, v{k2}, v15, s[60:61]", f"v_cndmask_b32 v{l+1}, v{k2+1}, v15, s[60:61]",
                f"ds_write_b128 v3, {v(q,4)}", f"ds_write_b64 v4, {v(l,2)}"]
    def signal(): return sp(f"v_mov_b32 v12, {LFLAG}\ns_mov_b64 exec, 1\nds_add_u32 v12, v13\ns_mov_b64 exec, -1")
    def o_store(O, den, PM, PL):
        L = []
        for t in range(4):
            L.append(f"v_rcp_f32 v{den[t]}, v{den[t]}")
            for n in range(6):
                L.append(f"v_pk_mul_f32 {v(O[t]+2*n,2)}, {v(O[t]+2*n,2)}, {v(den[t],2)} op_sel_hi:[1,0]")
            for n in range(4): L.append(f"v_cvt_pk_bf16_f32 v{PM+4*t+n}, v{O[t]+2*n}, v{O[t]+2*n+1}")
            for n in range(2): L.append(f"v_cvt_pk_bf16_f32 v{PL+2*t+n}, v{O[t]+8+2*n}, v{O[t]+9+2*n}")
            L.append(f"buffer_store_dwordx4 {v(PM+4*t,4)}, v1, s[12:15], s{76+(t>>1)} offen offset:{(t&1)*1024} sc1")
            if t & 1: L.append(f"buffer_store_dwordx4 {v(PL+2*t-2,4)}, v2, s[12:15], s{76+(t>>1)} offen offset:2048 sc1")
        return L

    Q2d = [56, 60, 62, 66]; Q2op = [56, 58, 62, 64]
    VT = [68 + 8*u for u in range(4)]
    VQ = [100, 104]; VL = [108, 110]
    Q1 = [112 + 4*t for t in range(4)]
    S = [160, 176]; O = [192 + 16*t for t in range(4)]; P = 128; MASK = 16
    started = set()
    def pairs_seq(pairs):
        L = []
        for n, (t, u, m) in enumerate(pairs):
            sb = S[n & 1]; k2 = K2d[u] - (2 if t & 1 else 0)
            L.append(f"{MF32} {v(sb,16)}, {v(K1[u],4)}, {v(Q1[t],4)}, {v(MASK,16) if m else 0}")
            L.append(f"{MF32} {v(sb,16)}, {v(k2,4)}, {v(Q2op[t],4)}, {v(sb,16)}")
            for c in range(2):
                for g in (2*c, 2*c+1):
                    for r in range(4): L.append(f"v_exp_f32 v{sb+4*g+r}, v{sb+4*g+r}")
                    L.append(f"v_cvt_pk_bf16_f32 v{P+2*g}, v{sb+4*g}, v{sb+4*g+1}")
                    L.append(f"v_cvt_pk_bf16_f32 v{P+2*g+1}, v{sb+4*g+2}, v{sb+4*g+3}")
                first = (c == 0 and t not in started); started.add(t)
                L.append(f"{MF32} {v(O[t],16)}, {v(VT[u]+4*c,4)}, {v(P+4*c,4)}, {0 if first else v(O[t],16)}")
        return L
    def segment(pairs, hooks):
        L = []
        def qk(n):
            t, u, m = pairs[n]; sb = S[n & 1]; k2 = K2d[u] - (2 if t & 1 else 0)
            return (f"{MF32} {v(sb,16)}, {v(K1[u],4)}, {v(Q1[t],4)}, {v(MASK,16) if m else 0}",
                    f"{MF32} {v(sb,16)}, {v(k2,4)}, {v(Q2op[t],4)}, {v(sb,16)}")
        def pv(n, c):
            t, u, m = pairs[n]
            first = (c == 0 and t not in started); started.add(t)
            return f"{MF32} {v(O[t],16)}, {v(VT[u]+4*c,4)}, {v(P+4*c,4)}, {0 if first else v(O[t],16)}"
        def grp(n, g):
            sb = S[n & 1] + 4*g
            for r in range(4): L.append(f"v_exp_f32 v{sb+r}, v{sb+r}")
            L.append(f"v_cvt_pk_bf16_f32 v{P+2*g}, v{sb}, v{sb+1}")
            L.append(f"v_cvt_pk_bf16_f32 v{P+2*g+1}, v{sb+2}, v{sb+3}")
        N = len(pairs)
        L += hooks.get(-1, [])
        a, b = qk(0); L += [a, b]
        L += hooks.get(-2, [])
        for n in range(N):
            if n + 1 < N:
                L += hooks.get(("pre", n + 1), [])
                a, b = qk(n + 1); L.append(a)
            grp(n, 0)
            if n + 1 < N: L.append(b)
            grp(n, 1)
            if n > 0: L.append(pv(n - 1, 1))
            L += hooks.get(n, [])
            grp(n, 2)
            L += hooks.get(("prepv", n), [])
            L.append(pv(n, 0))
            grp(n, 3)
        L.append(pv(N - 1, 1))
        return L
    blk = list(lastk)
    blk += sp("v_mov_b32 v58, 0\nv_mov_b32 v59, 0\nv_mov_b32 v64, 0\nv_mov_b32 v65, 0\nv_mov_b32 v12, s63\nv_mov_b32 v13, 1\nv_and_b32 v11, 0x1f0, v1")
    for t in range(4):
        for tt in (2*t, 2*t+1):
            for n in range(2):
                blk.append(f"v_pk_mul_f32 {v(acc(tt,3)+2*n,2)}, {v(acc(tt,3)+2*n,2)}, v[14:15] op_sel_hi:[1,0]")
        blk += conv(t, 3, Q2d[t], K2d[t]) + conv(t, 2, VQ[t&1], VQ[t&1]+2)
        blk += vrows(VQ[t&1], VL[t&1], K2d[t])
        blk += [f"ds_read_b64_tr_b16 {v(VT[t]+4*cc+2*jj,2)}, v5 offset:{(16*cc+8*jj)*48}" for cc in range(2) for jj in range(2)]
        blk += conv(t, 1, K1[t], K1[t]+2)
    def stK1(t): return f"buffer_store_dwordx4 {v(K1[t],4)}, v1, s[12:15], s66 offen offset:{t*1024} sc1"
    def stK2(p): return f"buffer_store_dwordx4 {v(K2d[2*p],4)}, v2, s[12:15], s67 offen offset:{p*512} sc1"
    def stVT(t): return [f"buffer_store_dwordx4 {v(VT[t]+4*cc,4)}, v7, s[12:15], s{68+(t>>1)} offen offset:{((t&1)*2+cc)*672} sc1" for cc in range(2)]
    blk += [stK1(0)] + stVT(0) + [stK1(1), stK2(0)] + stVT(1) + [stK1(2)] + stVT(2) + [stK1(3), stK2(1)] + stVT(3)
    for t in range(4):
        for tt in (2*t, 2*t+1):
            for n in range(2):
                blk.append(f"v_pk_mul_f32 {v(acc(tt,0)+2*n,2)}, {v(acc(tt,0)+2*n,2)}, s[64:65]")
        blk += conv(t, 0, Q1[t], Q1[t]+2)
    own = [(t, u, t == u) for u in range(4) for t in range(u, 4)]
    flagB = ["!s_waitcnt vmcnt(0)", "buffer_store_dword v13, v12, s[12:15], 0 offen sc1"]
    emit(schedule(blk, prio=lambda l, i: 3000 if "buffer_store" in l else 0, vm_gap=opt.get("gapB", 60), prev=prevl(), verbose=vb))
    stamp(2)
    emit(schedule(segment(own, {opt.get("flagpair", 4): flagB}), inorder=True, prev=prevl(), verbose=vb))
    stamp(3)
    emit(gate_loads(132))
    A("s_cmp_lg_u32 s22, 0\ns_cbranch_scc1 L_B_halo")
    emit(signal())
    A("s_waitcnt vmcnt(0)")
    emit(schedule(gate_fin(132), inorder=True))
    A("s_branch L_B_fin")
    A.label("L_B_halo")
    A(f"""
    s_sub_u32 s70, s22, 1
    s_sub_u32 s71, s22, 2
    s_max_i32 s71, s71, 0
    s_sub_u32 s28, s22, s71
    s_lshl_b32 s28, s28, 2
    v_subrev_u32 v8, 4, v12
    v_subrev_u32 v9, s28, v12
    v_cndmask_b32 v8, v9, v8, s[60:61]
    """)
    for r in range(66, 70): A(f"s_sub_u32 s{r}, s{r}, {KVB_SZ}")
    poll("B", 8, "s[12:15], 0", 9)
    stamp(4); stamp(1, 3)
    def ldK1(u): return f"buffer_load_dwordx4 {v(K1[u],4)}, v1, s[12:15], s66 offen offset:{u*1024} sc1"
    def ldK2(p): return f"buffer_load_dwordx4 {v(K2d[2*p],4)}, v11, s[12:15], s67 offen offset:{p*512} sc1"
    def ldVT(u): return [f"buffer_load_dwordx4 {v(VT[u]+4*cc,4)}, v6, s[12:15], s{68+(u>>1)} offen offset:{((u&1)*2+cc)*672} sc1" for cc in range(2)]
    seq = []
    for u in range(4):
        A(ldK1(u)); seq.append(("K1", 0, u))
        if u % 2 == 0: A(ldK2(u >> 1)); seq.append(("K2", 0, u >> 1))
        emit(ldVT(u)); seq += [("V", 0, u), ("V", 0, u)]
    emit(signal())
    emit(schedule(gate_fin(132), inorder=True)); seq.append(("G",))
    for vv in range(16): A(f"v_xor_b32 v{MASK+vv}, 0xff800000, v{MASK+vv}")
    A(f"s_sub_u32 s28, s70, s71\ns_mul_i32 s28, s28, {KVB_SZ}")
    for r in range(66, 70): A(f"s_sub_u32 s{r}, s{r}, s28")
    p2 = [(t, u, False) for u in range(4) for t in range(4)]
    hooks = {}
    def waitfor(key):
        last = max(i for i, k in enumerate(seq) if k == key)
        return f"s_waitcnt vmcnt({len(seq) - 1 - last})"
    hooks[-1] = st(2, 3) + [waitfor(("K2", 0, 0))] + st(3, 3)
    for n in range(16):
        t, u, _ = p2[n]
        if n + 1 < 16 and p2[n+1][0] == 0:
            un = p2[n+1][1]
            hooks[("pre", n + 1)] = [waitfor(("K2", 0, 1) if un == 2 else ("K1", 0, un))]
        h = []
        if t == 0 and u > 0:
            h.append(ldK1(u - 1)); seq.append(("K1", 1, u - 1))
            h += ldVT(u - 1); seq += [("V", 1, u - 1)] * 2
        if t == 0 and u == 3:
            h.append(ldK2(0)); seq.append(("K2", 1, 0))
        hooks[n] = (st(4+u, 3) if t == 3 else []) + h
        if t == 0: hooks[("prepv", n)] = [waitfor(("V", 0, u))]
    def nops_only(L):
        out = []; em = [I(l) for l in prevl()]
        for l in L:
            x = I(l); d = 0; n = 0
            for p in reversed(em[-24:]):
                n = max(n, need(p, x) - d); d += p.states
                if d >= 20: break
            if n > 0:
                out.append(f"s_nop {n-1}"); em.append(I(out[-1]))
            out.append(l); em.append(x)
        return out
    emit(nops_only(segment(p2, hooks)))
    stamp(5); stamp(8, 3)
    A("s_cmp_eq_u32 s22, 1\ns_cbranch_scc1 L_B_fin")
    hk = [ldK2(1), ldK1(3)] + ldVT(3)
    w0 = waitfor(("K2", 1, 0))
    seq += [("K2", 1, 1), ("K1", 1, 3), ("V", 1, 3), ("V", 1, 3)]
    p3 = [(t, u, t == u) for u in range(4) for t in range(u + 1)]
    hooks = {-1: [w0], -2: hk}
    for n in range(10):
        t, u, _ = p3[n]
        if n + 1 < 10 and p3[n+1][0] == 0:
            un = p3[n+1][1]
            if un == 2: hooks[("pre", n + 1)] = [waitfor(("K2", 1, 1))]
            if un == 3: hooks[("pre", n + 1)] = [waitfor(("K1", 1, 3))]
        if t == 0 and u == 3: hooks[("prepv", n)] = [waitfor(("V", 1, 3))]
    emit(nops_only(segment(p3, hooks)))
    A.label("L_B_fin")
    stamp(6)
    emit(schedule(o_store(O, [o + 12 for o in O], 136, 152), prev=[f"{MF32} {v(O[3],16)}, v[0:3], v[0:3], {v(O[3],16)}"], inorder=True, verbose=vb))
    A("s_branch L_P3c")

    A.label("L_A")
    Q2a = [56 + 2*t for t in range(4)]
    AVQ = [64 + 4*t for t in range(4)]; AVL = [80 + 2*t for t in range(4)]
    FS = [88, 100]; PK = 112
    PT = [160, 176]; KV0, KV1 = 192, 208; E = 224; TM = 244
    PQ = [64 + 10*t for t in range(4)]
    def premfma(t, op1, op2):
        return [f"{MF32} {v(PT[t&1],16)}, v[16:19], {v(op1,4)}, 0", f"{MF32} {v(PT[t&1],16)}, v[20:23], {v(op2,4)}, {v(PT[t&1],16)}"]
    def softmax2(p, dst):
        a, b, c, d = TM, TM+2, TM+4, TM+6
        L = [f"v_max3_f32 v{a}, v{p}, v{p+1}, v{p+2}", f"v_max3_f32 v{b}, -v{p}, -v{p+1}, -v{p+2}"]
        for n in (3, 5, 7):
            L += [f"v_max3_f32 v{a}, v{a}, v{p+n}, v{p+n+1}", f"v_max3_f32 v{b}, v{b}, -v{p+n}, -v{p+n+1}"]
        L += sp(f"""
        v_max_f32 v{a}, v{a}, v{p+9}
        v_max_f32_e64 v{b}, v{b}, -v{p+9}
        v_permlane32_swap_b32 v{a}, v{b}
        v_max_f32 v{a}, v{a}, v{b}
        v_mul_f32 v{b}, s64, v{a}
        v_mul_f32 v{a}, s64, v{a}
        v_permlane32_swap_b32 v{a}, v{b}
        """)
        for n in range(5):
            L.append(f"v_pk_fma_f32 {v(E+2*n,2)}, {v(p+2*n,2)}, s[64:65], {v(a,2)} op_sel_hi:[1,1,0] neg_lo:[0,0,1] neg_hi:[0,0,1]")
            L += [f"v_exp_f32 v{E+2*n}, v{E+2*n}", f"v_exp_f32 v{E+2*n+1}, v{E+2*n+1}"]
        for n in range(5):
            L.append(f"v_pk_fma_f32 {v(E+10+2*n,2)}, {v(p+2*n,2)}, s[64:65], {v(b,2)} op_sel_hi:[1,1,0] neg_lo:[1,0,1] neg_hi:[1,0,1]")
            L += [f"v_exp_f32 v{E+10+2*n}, v{E+10+2*n}", f"v_exp_f32 v{E+11+2*n}, v{E+11+2*n}"]
        L += [f"v_pk_add_f32 {v(c,2)}, {v(E,2)}, {v(E+2,2)}", f"v_pk_add_f32 {v(d,2)}, {v(E+10,2)}, {v(E+12,2)}"]
        for n in (4, 6, 8):
            L += [f"v_pk_add_f32 {v(c,2)}, {v(c,2)}, {v(E+n,2)}", f"v_pk_add_f32 {v(d,2)}, {v(d,2)}, {v(E+10+n,2)}"]
        L += sp(f"""
        v_add_f32 v{c}, v{c}, v{c+1}
        v_add_f32 v{d}, v{d}, v{d+1}
        v_permlane32_swap_b32 v{c}, v{d}
        v_add_f32 v{c}, v{c}, v{d}
        v_rcp_f32 v{c}, v{c}
        v_mov_b32 v{d}, v{c}
        v_permlane32_swap_b32 v{c}, v{d}
        """)
        for n in range(10):
            L.append(f"v_pk_mul_f32 {v(E+2*n,2)}, {v(E+2*n,2)}, {v(c if n < 5 else d,2)} op_sel_hi:[1,0]")
            L.append(f"v_cvt_pk_bf16_f32 v{dst+n}, v{E+2*n}, v{E+2*n+1}")
        return L
    blk = list(lastk)
    blk += [f"v_lshl_or_b32 v{16+n}, v{24+n}, 16, v{16+n}" for n in range(6)]
    for t in range(4):
        blk += conv(t, 1, K1[t], K1[t]+2) + conv(t, 3, Q2a[t], K2d[t]) + conv(t, 2, AVQ[t], AVQ[t]+2)
    blk += sp(f"""
    v_and_b32 v122, 31, v0
    v_lshrrev_b32 v123, 5, v0
    v_bfrev_b32 v124, 1
    v_min_u32 v11, 20, v122
    v_mad_u32_u24 v11, v123, 21, v11
    v_lshlrev_b32 v11, 4, v11
    v_cmp_ge_u32 s[70:71], 20, v122
    v_cndmask_b32 v8, v124, v1, s[70:71]
    v_cndmask_b32 v9, v124, v11, s[70:71]
    v_lshlrev_b32 v10, 9, v123
    v_lshl_add_u32 v10, v122, 3, v10
    v_cmp_ge_u32 s[72:73], 21, v122
    v_cndmask_b32 v10, v124, v10, s[72:73]
    v_mov_b32 v12, s63
    v_mov_b32 v13, 1
    """)
    for t in range(4):
        blk += premfma(t, K1[t], K2d[t])
        blk += softmax2(PT[t&1], PK)
        blk += vrows(AVQ[t], AVL[t], K2d[t])
        blk += [f"ds_read_b64_tr_b16 {v(FS[cc]+8+2*jj,2)}, v5 offset:{(16*cc+8*jj)*48}" for cc in range(2) for jj in range(2)]
        blk += [f"ds_write_b64 v6, {v(PK+2*n,2)} offset:{8*n}" for n in range(5)]
        for cc in range(2):
            for jj in range(2):
                ro = (16*cc + 8*jj) * 80
                blk += [f"ds_read_b64_tr_b16 {v(FS[cc]+2*jj,2)}, v7 offset:{ro}", f"ds_read_b64_tr_b16 {v(FS[cc]+4+2*jj,2)}, v14 offset:{ro+32}"]
        for cc in range(2):
            first = (t == 0 and cc == 0)
            blk.append(f"{MF32} {v(KV0,16)}, {v(FS[cc],4)}, {v(FS[cc]+8,4)}, {0 if first else v(KV0,16)}")
            blk.append(f"{MF32} {v(KV1,16)}, {v(FS[cc]+4,4)}, {v(FS[cc]+8,4)}, {0 if first else v(KV1,16)}")
    for n in range(8): blk.append(f"v_cvt_pk_bf16_f32 v{PK+n}, v{KV0+2*n}, v{KV0+2*n+1}")
    for n in range(2): blk.append(f"v_cvt_pk_bf16_f32 v{PK+8+n}, v{KV1+2*n}, v{KV1+2*n+1}")
    blk += sp(f"""
    buffer_store_dwordx4 {v(PK,4)}, v8, s[12:15], s67 offen sc1
    buffer_store_dwordx4 {v(PK+4,4)}, v9, s[12:15], s67 offen offset:1024 sc1
    buffer_store_dwordx2 {v(PK+8,2)}, v10, s[12:15], s67 offen offset:336 sc1
    !s_waitcnt vmcnt(0)
    buffer_store_dword v13, v12, s[12:15], 0 offen sc1
    """)
    for t in range(4): blk += conv(t, 0, K1[t], K1[t]+2)
    for t in range(4):
        blk += premfma(t, K1[t], Q2a[t])
        blk += softmax2(PT[t&1], PQ[t])
    sch = schedule(blk, prio=lambda l, i: 6000 if "buffer_store" in l else 0, vm_lat=opt.get("ackA", 1000), prev=prevl(), verbose=vb)
    if prof and sset == 0:
        k = max(i for i, l in enumerate(sch) if "buffer_store_dwordx2" in l)
        sch = sch[:k+1] + st(2) + st(3) + sch[k+1:]
    emit(sch)
    stamp(4)
    emit(gate_loads(32))
    A("v_and_b32 v8, 15, v0\nv_lshlrev_b32 v8, 2, v8\nv_mov_b32 v16, v30\nv_mov_b32 v17, v31")
    for n in range(8):
        A(f"v_cmp_eq_u32 vcc, {n}, v17\ns_nop 1\nv_cndmask_b32 v{24+n}, 0, v16, vcc")
    poll("A", 8, "s[12:15], s68", 9)
    stamp(5); stamp(1, 3)
    PB = [108 + 8*n for n in range(16)]; SUM = 240
    blk = []
    for n in range(16):
        blk += [f"buffer_load_dwordx4 {v(PB[n],4)}, v1, s[12:15], s66 offen offset:{(n&1)*KVP_SZ} sc1",
                f"buffer_load_dwordx4 {v(PB[n]+4,4)}, v11, s[12:15], s66 offen offset:{(n&1)*KVP_SZ+1024} sc1"]
        if n & 1: blk.append(f"s_add_u32 s66, s66, {2*KVP_SZ}")
    GL = opt.get("glook", 6)
    ld = [blk[i:i+5] for i in range(0, 40, 5)]
    blk = []
    for p_ in range(GL // 2): blk += ld[p_]
    blk += gate_fin(32)
    blk += sp(f"""
    v_and_b32 v8, 31, v0
    v_lshrrev_b32 v8, 1, v8
    v_add_u32 v8, 21, v8
    v_and_b32 v9, 32, v0
    v_add_lshl_u32 v8, v8, v9, 2
    v_and_b32 v9, 1, v0
    v_cmp_eq_u32 s[70:71], 1, v9
    """)
    for n in range(16):
        blk.append(f"{MF32} {v(SUM,16)}, v[24:27], {v(PB[n],4)}, {0 if n==0 else v(SUM,16)}")
        blk.append(f"{MF32} {v(SUM,16)}, v[28:31], {v(PB[n]+4,4)}, {v(SUM,16)}")
        if n & 1 and (n + GL) // 2 < 8:
            blk += ld[(n + GL) // 2]
            if (n + GL) // 2 == 7: blk += signal()
        if n in (0, 4, 8, 13, 15): blk += st(3 + (0, 4, 8, 13, 15).index(n), 3)
    for n in range(8): blk.append(f"v_cvt_pk_bf16_f32 v{16+n}, v{SUM+2*n}, v{SUM+2*n+1}")
    if prof and sset == 3: blk.append("!s_waitcnt lgkmcnt(0)")
    blk += sp("""
    ds_bpermute_b32 v24, v8, v16
    ds_bpermute_b32 v25, v8, v17
    ds_bpermute_b32 v28, v8, v18
    ds_bpermute_b32 v29, v8, v19
    v_mov_b32 v26, 0
    v_mov_b32 v27, 0
    """)
    OA = [128 + 16*t for t in range(4)]
    for c in range(2):
        for t in range(4):
            blk.append(f"{MF32} {v(OA[t],16)}, {v(16+4*c,4)}, {v(PQ[t]+4*c,4)}, {0 if c==0 else v(OA[t],16)}")
    blk += ["v_cndmask_b32 v24, v24, v28, s[70:71]", "v_cndmask_b32 v25, v25, v29, s[70:71]"]
    emit(schedule(blk, inorder=True, prev=prevl(), verbose=vb))
    stamp(6); stamp(8, 3)
    blk = []
    for t in range(4): blk.append(f"{MF32} {v(OA[t],16)}, v[24:27], {v(PQ[t]+8,4)}, {v(OA[t],16)}")
    for t in range(4):
        blk += [f"v_add_f32 v{OA[t]+12}, {fx(1e-6)}, v{OA[t]+8}", f"v_add_f32 v{OA[t]+14}, {fx(1e-6)}, v{OA[t]+8}",
                f"v_permlane32_swap_b32 v{OA[t]+14}, v{OA[t]+12}"]
    blk += o_store(OA, [o + 12 for o in OA], 32, 48)
    emit(schedule(blk, prio=lambda l, i: (2000 - i) if "buffer_store" in l else 0, prev=prevl(), verbose=vb))

    A.label("L_P3c")
    A(f"""
    v_mov_b32 v8, {LFLAG}
    ds_read_b32 v9, v8 offset:4
    v_mov_b32 v14, s78
    v_mov_b32 v15, 1
    s_setprio 0
    s_add_u32 s35, s57, s56
    s_waitcnt lgkmcnt(0)
    v_readfirstlane_b32 s79, v9
    s_cmp_ge_u32 s79, 4
    s_cbranch_scc1 L_lgp
    s_waitcnt vmcnt(0)
    buffer_store_dword v15, v14, s[12:15], 0 offen sc1
    """)
    A.label("L_P3pre")
    A("s_mov_b32 s79, 0")
    lwait("p", 4, 16)
    OF = 16; PACC = 36; WF = 56
    XROW = 336
    A(f"""
    s_lshr_b32 s72, s25, 2                  ; kh
    s_and_b32 s73, s25, 3                   ; tq
    v_lshrrev_b32 v2, 4, v0                 ; g
    v_bfe_u32 v3, v0, 2, 2                  ; r
    v_and_b32 v4, 3, v0                     ; c
    v_mul_u32_u24 v4, 40, v4
    s_mul_i32 s28, s72, 25600
    v_add_u32 v4, s28, v4
    v_lshrrev_b32 v5, 5, v0
    v_mul_u32_u24 v5, 20, v5
    v_bfe_u32 v6, v0, 4, 1
    v_lshl_add_u32 v5, v6, 2, v5
    v_add_u32 v5, v5, v3                    ; 20*(g>>1) + 4*(g&1) + r
    v_mov_b32 v7, 160
    v_mad_u32_u24 v8, v5, v7, v4
    v_mad_u32_u24 v5, v2, 20, v3
    v_add_u32 v5, 16, v5                    ; 20g + 16 + r
    v_mad_u32_u24 v9, v5, v7, v4
    v_add_u32 v10, {RG}, v8
    v_add_u32 v11, {RG}, v9
    s_waitcnt vmcnt(6)
    """)
    def wreads(s5, dst, am, al):
        L = []
        for ct in range(5):
            for jj in range(2):
                if s5 < 4: L.append(f"ds_read_b64_tr_b16 {v(dst+4*ct+2*jj,2)}, v{am} offset:{(40*s5+8*jj)*160 + 8*ct}")
                else: L.append(f"ds_read_b64_tr_b16 {v(dst+4*ct+2*jj,2)}, v{al} offset:{80*jj*160 + 8*ct}")
        return L
    for n in range(10): emit(wreads(n % 5, WF + 20*n, *((8, 9) if n < 5 else (10, 11))))
    A(f"""
    s_waitcnt vmcnt(0)
    s_cmp_lt_u32 s79, 4
    s_cbranch_scc1 L_P3_nf
    buffer_store_dword v15, v14, s[12:15], 0 offen sc1
    """)
    A.label("L_P3_nf")
    A(f"""
    v_and_b32 v3, 7, v0
    s_lshl_b32 s28, s73, 3
    v_add_u32 v3, s28, v3                   ; i
    v_bfe_u32 v4, v0, 3, 1                  ; p
    v_lshlrev_b32 v5, 4, v3
    v_lshl_add_u32 v10, v4, 10, v5
    v_lshl_add_u32 v10, v6, 9, v10
    v_lshrrev_b32 v7, 5, v0
    v_mul_u32_u24 v7, 2560, v7
    v_add_u32 v10, v10, v7
    v_lshl_add_u32 v7, v4, 2, v2            ; head g + 4p
    v_mul_u32_u24 v7, 2560, v7
    v_add_u32 v11, v5, v7
    v_lshl_add_u32 v12, v4, 5, v3
    s_lshl_b32 s28, s56, 6
    v_add_u32 v13, s28, v12
    v_lshlrev_b32 v13, 2, v13
    s_lshl_b32 s29, s72, 5
    s_add_u32 s28, s28, s29
    s_mul_i32 s74, s28, 2560
    s_add_u32 s74, s74, {OB}
    v_mul_u32_u24 v12, {XROW}, v12
    v_mul_u32_u24 v7, 80, v2
    s_mul_i32 s28, s72, {64*XROW}
    s_add_u32 s28, s28, {RG}
    v_add3_u32 v12, v12, v7, s28
    v_add_u32 v4, {2*RG}, v8
    v_add_u32 v5, {2*RG}, v9
    """)
    for G in range(4):
        A(f"s_add_u32 s28, s35, {G}\ns_and_b32 s28, s28, 3\ns_mul_i32 s28, s28, {8*2560}\ns_add_u32 s{64+G}, s28, s74")
    A("s_waitcnt lgkmcnt(0)\ns_barrier")
    stamp(7)
    A(f"""
    s_cmp_ge_u32 s25, 4
    s_cbranch_scc1 L_P3_h
    s_cmp_lg_u32 s25, 0
    s_cbranch_scc1 L_goP
    s_lshr_b32 s28, s56, 1
    s_lshl_b32 s28, s28, 10
    s_add_u32 s28, s28, {F2}
    v_lshrrev_b32 v6, 3, v0
    v_and_b32 v7, 7, v0
    v_lshlrev_b32 v7, 2, v7
    v_lshl_add_u32 v6, v6, 7, v7
    s_branch L_P3_poll
    """)
    A.label("L_P3_h")
    wo_group(2, 2, 15, 16, "t")
    wo_group(3, 0)
    A("s_branch L_goP")
    A.label("L_P3_poll")
    poll("P", 6, "s[12:15], s28", 14)
    A("s_barrier")
    stamp(8); stamp(1, 1)
    LOOK = 4
    def oload(n):
        G, s5 = divmod(n, 5); o = OF + 4*(n % 5)
        if s5 < 4:
            return [f"buffer_load_dwordx4 {v(o,4)}, v10, s[12:15], s{64+G} offen sc1",
                    f"s_add_u32 s{64+G}, s{64+G}, 5120" if s5 < 3 else f"s_sub_u32 s{64+G}, s{64+G}, {3*5120}"]
        return [f"buffer_load_dwordx4 {v(o,4)}, v11, s[12:15], s{64+G} offen offset:2048 sc1"]
    blk = []
    for n in range(LOOK): blk += oload(n)
    RW = []
    for m in range(10, 20): RW += wreads(m % 5, WF + 20*(m - 10), *((4, 5) if m < 15 else (8, 9)))
    per = opt.get("rper", 7)
    for n in range(20):
        o = OF + 4*(n % 5)
        if n % 5 == 4:
            blk += sp(f"""
            v_mov_b32 v6, v{o+2}
            v_mov_b32 v7, v{o+3}
            v_mov_b32_dpp v{o+2}, v{o} row_ror:8 row_mask:0xf bank_mask:0x3
            v_mov_b32_dpp v{o+3}, v{o+1} row_ror:8 row_mask:0xf bank_mask:0x3
            v_mov_b32_dpp v{o}, v6 row_ror:8 row_mask:0xf bank_mask:0xc
            v_mov_b32_dpp v{o+1}, v7 row_ror:8 row_mask:0xf bank_mask:0xc
            """)
        buf = WF + 20*(n % 10)
        R = [RW.pop(0) for _ in range(min(per, len(RW)))] if n >= 1 else []
        for ct in range(5):
            blk.append(f"{MF16} {v(PACC+4*ct,4)}, {v(buf+4*ct,4)}, {v(o,4)}, {0 if n==0 else v(PACC+4*ct,4)}")
            if ct == 0:
                if n == 0: blk += st(3, 1) + ["s_barrier"]
                if n == 19: blk += st(5, 1)
                if n + LOOK < 20: blk += oload(n + LOOK)
                if n == 15: blk += [f"s_mov_b32 s28, {GATE}", "buffer_load_dword v14, v13, s[12:15], s28 offen sc1"]
            k = (len(R) + (4 - ct)) // (5 - ct)
            blk += R[:k]; R = R[k:]
    blk += sp(f"""
    v_mul_u32_u24 v2, 26, v0
    v_lshrrev_b32 v2, 8, v2                 ; lane/10
    s_cmp_eq_u32 s72, 0
    s_cselect_b64 vcc, -1, 0
    v_sub_f32 v15, 1.0, v14
    v_mul_u32_u24 v3, 10, v2
    v_cndmask_b32 v14, v15, v14, vcc
    v_sub_u32 v3, v0, v3                    ; piece
    """)
    for ct in range(5):
        for n in range(2): blk.append(f"v_pk_mul_f32 {v(PACC+4*ct+2*n,2)}, {v(PACC+4*ct+2*n,2)}, v[14:15] op_sel_hi:[1,0]")
        blk.append(f"ds_write_b128 v12, {v(PACC+4*ct,4)} offset:{16*ct}")
    emit(schedule(blk, inorder=True, prev=prevl(), verbose=vb))
    A(f"""
    s_lshl_b32 s28, s25, 3
    v_add_u32 v2, s28, v2
    v_mul_u32_u24 v4, {XROW}, v2
    v_lshl_add_u32 v4, v3, 5, v4
    v_add_u32 v4, {RG}, v4
    s_lshl_b32 s28, s56, 6
    v_add_u32 v2, s28, v2
    v_mul_u32_u24 v2, 1280, v2
    s_mul_i32 s28, s57, 160
    v_lshlrev_b32 v3, 4, v3
    v_add3_u32 v2, v2, v3, s28
    s_mov_b32 s16, s50
    s_mov_b32 s17, s51
    s_mov_b32 s18, 2621440
    s_mov_b32 s28, -1
    s_mov_b32 s29, 0xff
    s_movk_i32 s30, 5120
    s_waitcnt lgkmcnt(0)
    s_barrier                               ; b15
    """)
    stamp(6, 1)
    if prof and sset == 1: A("s_waitcnt lgkmcnt(0)")
    A("s_mov_b64 exec, s[28:29]")
    for rd in range(2):
        for kh in range(2):
            for hh in range(2):
                A(f"ds_read_b128 {v(64+16*rd+8*kh+4*hh,4)}, v4 offset:{rd*4*XROW + kh*64*XROW + 16*hh}")
    oflag = " sc1" if opt.get("osc1", 0) else ""
    for rd in range(2):
        A(f"s_waitcnt lgkmcnt({4-4*rd})")
        b = 64 + 16*rd
        for n in range(4): A(f"v_pk_add_f32 {v(b+2*n,2)}, {v(b+2*n,2)}, {v(b+8+2*n,2)}")
        for n in range(4): A(f"v_cvt_pk_bf16_f32 v{96+4*rd+n}, v{b+2*n}, v{b+2*n+1}")
        A(f"buffer_store_dwordx4 {v(96+4*rd,4)}, v2, s[16:19], {'s30' if rd else '0'} offen{oflag}")
    stamp(7, 1); stamp(8, 1)
    if prof:
        A("s_mov_b64 exec, -1\ns_cmp_ge_u32 s25, 4\ns_cbranch_scc1 L_end")
        A("s_waitcnt vmcnt(0)\ns_memtime s[76:77]\ns_memrealtime s[100:101]\ns_waitcnt lgkmcnt(0)")
        for k in range(1, 9): A(f"s_sub_u32 s{80+2*k}, s{80+2*k}, s80\nv_mov_b32 v{16+k}, s{80+2*k}")
        A(f"""
        s_sub_u32 s76, s76, s80
        v_mov_b32 v16, s76
        v_mov_b32 v25, s98
        v_mov_b32 v26, s100
        v_mov_b32 v27, 0
        s_lshl_b32 s28, s2, 2
        s_add_u32 s28, s28, s25
        s_lshl_b32 s28, s28, 6
        s_add_u32 s28, s28, {DBG}
        v_mov_b32 v2, 0
        buffer_store_dwordx4 v[16:19], v2, s[12:15], s28 offen
        buffer_store_dwordx4 v[20:23], v2, s[12:15], s28 offen offset:16
        buffer_store_dwordx4 v[24:27], v2, s[12:15], s28 offen offset:32
        """)
    A.label("L_end")
    return A

def wrap(A, lds=163840, header=""):
    hdr = header + f"; @launch grid=(256,1,1) block=(512,1,1) lds={lds}\n"
    return hdr + f""".amdgcn_target "amdgcn-amd-amdhsa--gfx950"
.text
.globl {NAME}
.p2align 8
.type {NAME},@function
{NAME}:
{A.text()}    s_endpgm
.section .rodata,"a"
.p2align 6
.amdhsa_kernel {NAME}
  .amdhsa_next_free_vgpr 256
  .amdhsa_next_free_sgpr 102
  .amdhsa_accum_offset 256
  .amdhsa_group_segment_fixed_size 0
  .amdhsa_kernarg_size 88
  .amdhsa_user_sgpr_count 2
  .amdhsa_user_sgpr_kernarg_segment_ptr 1
  .amdhsa_system_sgpr_workgroup_id_x 1
.end_amdhsa_kernel
"""
if __name__ == "__main__":
    HEADER = open("gated_mix__linear_kernel_hedgehog__sliding_block__prompt.s.ref").read().split("; Override")[0]
    opt = {"map": 2, "rot": 0, "touch": 3, "d0": 4, "dl": 5, "w3a": 1}
    out = "k4.s"
    for a in sys.argv[1:]:
        if "=" in a:
            k, x = a.split("="); opt[k] = int(x)
        else: out = a
    A = gen(opt)
    for p in check_hazards(A.lines): print("HAZARD", p)
    open(out, "w").write(wrap(A, header=HEADER))
```

```python
import sys
import gen4 as G
from asmlib import *
def build(opt, mode, out, wgsel=None):
    A = G.gen(dict(opt, prof=1))
    L = A.lines
    i = L.index("s_memtime s[76:77]")
    j = L.index("L_end:")
    L = [l.replace("s_memtime", "s_memrealtime") for l in L[:i]]
    L += ["s_memrealtime s[76:77]", "s_waitcnt lgkmcnt(0)"]
    if mode == "fixed":
        L += ["s_mov_b32 s28, 6000"]
    else:
        a, b = mode
        ra = 76 if a == 9 else 80+2*a; rb = 76 if b == 9 else 80+2*b
        L += [f"s_sub_u32 s28, s{rb}, s{ra}", "s_mul_i32 s28, s28, 4", "s_min_u32 s28, s28, 40000", "s_add_u32 s28, s28, 6000"]
        if wgsel is not None:
            L += [f"s_cmp_eq_u32 s2, {wgsel}", "s_cselect_b32 s28, s28, 0"]
    L += ["L_spin:", "s_memrealtime s[76:77]", "s_waitcnt lgkmcnt(0)", "s_sub_u32 s29, s76, s80", "s_cmp_lt_u32 s29, s28", "s_cbranch_scc1 L_spin", "L_end:"]
    A.lines = L
    open(out, "w").write(G.wrap(A))
if __name__ == "__main__":
    d = "cdna_kernels/"
    a, b = int(sys.argv[1]), int(sys.argv[2])
    for i, o in enumerate(sys.argv[3:]):
        opt = {"map":1,"rot":5}
        for kv in o.split(","):
            k, x = kv.split("="); opt[k] = int(x)
        build(opt, (a,b), d+f"p_{'abcdef'[i]}.s", None)
```

```python
import probe4 as P, gen4 as G
d = "cdna_kernels/"
P.build({"map":2,"rot":0,"touch":3,"d0":4,"dl":5,"w3a":1}, "fixed", d+"p_fixed.s")
base = open(d+"p_fixed.s").read()
def empty(name, vg):
    return f"""
.text
.globl {name}
.p2align 8
.type {name},@function
{name}:
    s_endpgm
.section .rodata,"a"
.p2align 6
.amdhsa_kernel {name}
  .amdhsa_next_free_vgpr {vg}
  .amdhsa_next_free_sgpr 16
  .amdhsa_accum_offset {vg}
  .amdhsa_group_segment_fixed_size 0
  .amdhsa_kernarg_size 88
  .amdhsa_user_sgpr_count 2
  .amdhsa_user_sgpr_kernarg_segment_ptr 1
  .amdhsa_system_sgpr_workgroup_id_x 1
.end_amdhsa_kernel
"""
main = f"; @launch kernel={G.NAME} grid=(256,1,1) block=(512,1,1) lds=163840\n"
body = base.split("\n",1)[1] + empty("e8_kernel", 8) + empty("e256_kernel", 256)
def L(k, g, b, l): return f"; @launch kernel={k} grid=({g},1,1) block=({b},1,1) lds={l}\n"
open(d+"p_a.s","w").write(main + body)
open(d+"p_b.s","w").write(main + L("e8_kernel",1,64,0)*4 + body)
open(d+"p_c.s","w").write(main + L("e8_kernel",256,256,0)*4 + body)
open(d+"p_d.s","w").write(main + L("e256_kernel",256,512,0)*4 + body)
open(d+"p_e.s","w").write(main + L("e256_kernel",256,512,163840)*4 + body)
open(d+"p_f.s","w").write(main + L("e8_kernel",256,64,163840)*4 + body)
```

```python
import sys, importlib
from asmlib import *
def build(G, opt, mode, out, wgsel=None):
    A = G.gen(dict(opt, prof=1))
    L = [l.replace("s_memtime", "s_memrealtime") for l in A.lines]
    idx = [i for i, l in enumerate(L) if l == "s_memrealtime s[76:77]"]
    i = idx[1]; j = L.index("s_endpgm", i); L = L[:i] + L[j:]
    i = idx[0]; j = L.index("s_endpgm", i)
    M = ["s_memrealtime s[76:77]", "s_waitcnt lgkmcnt(0)"]
    if mode == "fixed": M += ["s_mov_b32 s28, 6000"]
    else:
        a, b = mode
        ra = 76 if a == 9 else 80+2*a; rb = 76 if b == 9 else 80+2*b
        M += [f"s_sub_u32 s28, s{rb}, s{ra}", "s_mul_i32 s28, s28, 4", "s_min_u32 s28, s28, 40000", "s_add_u32 s28, s28, 6000"]
        if wgsel is not None: M += [f"s_cmp_eq_u32 s2, {wgsel}", "s_cselect_b32 s28, s28, 0"]
    M += ["L_spin:", "s_memrealtime s[76:77]", "s_waitcnt lgkmcnt(0)", "s_sub_u32 s29, s76, s80", "s_cmp_lt_u32 s29, s28", "s_cbranch_scc1 L_spin"]
    A.lines = L[:i] + M + L[j:]
    open(out, "w").write(G.wrap(A))
if __name__ == "__main__":
    G = importlib.import_module(sys.argv[1]); d = "cdna_kernels/"
    for i, a in enumerate(sys.argv[2:]):
        m, w = a.split("@"); w = None if w == "" else int(w)
        build(G, G.DEFAULTS, "fixed" if m == "f" else (int(m[0]), int(m[1])), d + f"p_{'abcdef'[i]}.s", w)
```

```python
import re

class Asm:
    def __init__(self):
        self.lines = []
    def __call__(self, s=""):
        for l in s.split("\n"):
            l = l.strip()
            if l:
                self.lines.append(l)
    def label(self, name):
        self.lines.append(name + ":")
    def text(self):
        out = []
        for l in self.lines:
            if l.endswith(":") or l.startswith("."):
                out.append(l)
            else:
                out.append("    " + l)
        return "\n".join(out) + "\n"

def v(a, n=1):
    return f"v{a}" if n == 1 else f"v[{a}:{a+n-1}]"
def s(a, n=1):
    return f"s{a}" if n == 1 else f"s[{a}:{a+n-1}]"

_reg = re.compile(r"(?<![\w])([vs])(?:(\d+)|\[(\d+):(\d+)\])")
def regs_of(op):
    out = set()
    for m in _reg.finditer(op):
        k = m.group(1)
        if m.group(2) is not None:
            out.add((k, int(m.group(2))))
        else:
            for i in range(int(m.group(3)), int(m.group(4)) + 1):
                out.add((k, i))
    if re.search(r"\bvcc(_lo|_hi)?\b", op): out |= {("s", "vcc")}
    if re.search(r"\bexec\b", op): out |= {("s", "exec")}
    if re.search(r"\bm0\b", op): out |= {("s", "m0")}
    return out

TRANS = ("v_exp_", "v_log_", "v_rcp_", "v_rsq_", "v_sqrt_", "v_sin_", "v_cos_")
class I:
    def __init__(self, line):
        self.line = line
        code = line.split(";")[0].strip()
        p = code.split(None, 1)
        self.op = p[0]
        rest = p[1] if len(p) > 1 else ""
        ops = []; depth = 0; cur = ""
        for ch in rest:
            if ch == "[": depth += 1
            if ch == "]": depth -= 1
            if ch == "," and depth == 0:
                ops.append(cur.strip()); cur = ""
            else: cur += ch
        if cur.strip(): ops.append(cur.strip())
        self.ops = ops
        op = self.op
        self.mfma = op.startswith("v_mfma")
        self.valu = op.startswith("v_") and not self.mfma
        self.trans = op.startswith(TRANS)
        self.dot = op.startswith("v_dot")
        self.vmem = op.startswith(("buffer_", "global_", "flat_"))
        self.ds = op.startswith("ds_")
        self.salu = op.startswith("s_")
        self.lds_dma = self.vmem and " lds" in (" " + rest)
        W = set(); R = set()
        o = [regs_of(x) for x in ops]
        if self.mfma:
            W = o[0]; self.A = o[1]; self.B = o[2]; self.C = o[3]; R = o[1] | o[2] | o[3]
            self.passes = 8 if "32x32" in op else 4
        elif self.valu:
            if op.startswith("v_nop"): pass
            elif op.startswith("v_permlane") and "swap" in op:
                W = o[0] | o[1]; R = o[0] | o[1]
            elif op.startswith(("v_add_co", "v_sub_co", "v_addc_co", "v_subb_co", "v_div_scale", "v_mad_u64")):
                W = o[0] | o[1]; R = set().union(*o[2:])
            else:
                W = o[0]; R = set().union(*o[1:]) if len(o) > 1 else set()
                if op.startswith(("v_fmac", "v_dot2c", "v_writelane")): R = R | o[0]
                if op.startswith("v_cmpx"): W = W | {("s", "exec")}
        elif self.vmem:
            if "load" in op and not self.lds_dma:
                W = o[0]; R = set().union(*o[1:])
                if "d16" in op: R = R | o[0]
            elif op.startswith("buffer_atomic") and "sc0" in rest:
                W = o[0]; R = set().union(*o)
            else:
                R = set().union(*o) if o else set()
                if self.lds_dma: R = R | {("s", "m0")}
            self.wide_store = ("store" in op and ("x4" in op or "x3" in op))
            if self.wide_store:
                self.sdata = o[0] if op.startswith("buffer") else o[1]
        elif self.ds:
            if "read" in op or "permute" in op or "swizzle" in op or "_rtn" in op:
                W = o[0]; R = set().union(*o[1:])
            else:
                R = set().union(*o)
        elif self.salu:
            if op.startswith(("s_cmp", "s_cbranch", "s_branch", "s_waitcnt", "s_nop", "s_barrier", "s_endpgm", "s_sleep", "s_setprio", "s_bitcmp")):
                R = set().union(*o) if o else set()
            else:
                W = o[0] if o else set(); R = set().union(*o[1:]) if len(o) > 1 else set()
                if "saveexec" in op: W = W | {("s", "exec")}
        m = re.search(r";\s*junk\s+(.*)", line)
        if m:
            j = regs_of(m.group(1)); R = R - j
            if self.mfma: self.A = self.A - j; self.B = self.B - j
        m = re.search(r";\s*reads\s+(.*)", line)
        if m: R = R | regs_of(m.group(1))
        self.W = W; self.R = R
        self.states = 0 if op.endswith(":") else 1
        if op == "s_nop": self.states = int(ops[0], 0) + 1

def need(p, c):
    n = 0
    pv = {r for r in p.W if r[0] == "v"}
    ps = {r for r in p.W if r[0] == "s"}
    if p.mfma:
        if c.mfma:
            if pv & (c.A | c.B): n = max(n, {4: 8, 8: 12}[p.passes])
            if pv & c.C and not (pv == c.C and p.passes == c.passes): n = max(n, {4: 6, 8: 10}[p.passes])
            if pv & c.W and not (pv & c.C) : n = max(n, {4: 6, 8: 10}[p.passes])
        elif c.valu or c.vmem or c.ds:
            if pv & (c.R | c.W): n = max(n, {4: 8, 8: 12}[p.passes])
        if c.valu and (p.C & c.W): n = max(n, {4: 3, 8: 7}[p.passes])
        if (c.ds or c.vmem) and (p.C & c.W): n = max(n, {4: 3, 8: 7}[p.passes])
    if p.valu:
        if c.mfma and pv & c.R: n = max(n, 2)
        if c.mfma and ("s", "exec") in ps: n = max(n, 4)
        if p.trans and c.valu and not c.trans and pv & (c.R | c.W): n = max(n, 1)
        if p.trans and (c.vmem or c.ds) and pv & c.R: n = max(n, 1)
        if c.op.startswith("v_permlane") and pv & c.R: n = max(n, 2)
        if c.op.startswith(("v_readlane", "v_readfirstlane")) and pv & c.R: n = max(n, 1)
        if c.valu and ps & c.R: n = max(n, 2)
        if c.vmem and ps & c.R: n = max(n, 5)
        if c.salu and ps & c.R and not c.op.startswith("s_cbranch"): n = max(n, 0)
        if p.dot and c.valu and pv & (c.R | c.W) and c.op != p.op: n = max(n, 3)
        if p.dot and (c.vmem or c.ds or c.mfma) and pv & c.R: n = max(n, 3)
        if "dpp" in c.line or "row_" in c.line:
            if pv & c.R: n = max(n, 2)
        if ("op_sel" in p.line and not p.op.startswith("v_pk_")) and c.valu and pv & (c.R | c.W): n = max(n, 1)
    if p.salu and ("s", "m0") in ps and c.lds_dma: n = max(n, 1)
    if p.vmem and getattr(p, "wide_store", False):
        if c.valu and p.sdata & c.W: n = max(n, 2)
        elif p.sdata & c.W: n = max(n, 1)
    return n

def check_hazards(lines, window=24):
    ins = []; labels = {}
    for l in lines:
        code = l.split(";")[0].strip()
        if not code or code.startswith("."): continue
        if code.endswith(":"):
            labels[code[:-1]] = len(ins); continue
        ins.append(I(l.strip()))
    def succ(i):
        x = ins[i]
        if x.op == "s_endpgm": return []
        if x.op == "s_branch": return [labels[x.ops[0]]]
        r = [i + 1] if i + 1 < len(ins) else []
        if x.op.startswith("s_cbranch"): r.append(labels[x.ops[0]])
        if x.op == "s_call_b64": r.append(labels[x.ops[1]])
        if x.op == "s_setpc_b64": return []
        return r
    probs = []
    for i, p in enumerate(ins):
        if not (p.mfma or p.valu or p.salu or p.vmem): continue
        stack = [(j, 0) for j in succ(i)]
        seen = {}
        while stack:
            j, d = stack.pop()
            if d >= 20 or j >= len(ins): continue
            if seen.get(j, 99) <= d: continue
            seen[j] = d
            c = ins[j]
            n = need(p, c)
            if n > d:
                probs.append((i, j, n, d, p.line, c.line))
            for k in succ(j): stack.append((k, d + c.states))
    return probs

def _scc_w(x):
    return x.salu and x.op.startswith(("s_add", "s_sub", "s_cmp", "s_and", "s_or", "s_xor", "s_lshl", "s_lshr", "s_ashr", "s_min", "s_max", "s_not", "s_bfe", "s_andn2", "s_bitcmp"))
def _scc_r(x):
    return x.salu and x.op.startswith(("s_cselect", "s_addc", "s_subb", "s_cmov", "s_cbranch_scc"))

def issue_cost(x):
    if x.mfma or x.trans or "swap" in x.op: return 8
    if x.valu:
        return 5 if (x.op.startswith(("v_pk_", "v_cvt_pk", "v_max3", "v_min3", "v_fma", "v_add3", "v_lshl_", "v_mad", "v_bfe")) or "e64" in x.op or "0x" in x.line or "s[" in x.line) else 4
    return 4
def ds_busy(x):
    if "write_b128" in x.op: return 52
    if "write_b64" in x.op: return 30
    if "write" in x.op or "add" in x.op: return 16
    if "read_b128" in x.op: return 16
    return 14

def schedule(lines, prio=None, lgkm0=0, vm0=0, ds_lat=90, vm_lat=900, vm_gap=0, prev=(), verbose=False, inorder=False, ds_slack=24, ds_mul=1.0, merge=None):
    if merge is None: merge = schedule.merge
    N = len(lines)
    fence = [l.startswith("!") for l in lines]
    ins = [I(l.lstrip("!")) for l in lines]
    for x in ins:
        x.R = set(x.R); x.W = set(x.W)
        if x.valu or x.ds or x.vmem or x.mfma: x.R.add(("s", "exec"))
        if _scc_w(x): x.W.add(("s", "scc"))
        if _scc_r(x): x.R.add(("s", "scc"))
        if x.op.startswith("s_cbranch_vcc"): x.R.add(("s", "vcc"))
        if "dpp" in x.line and "bank_mask" in x.line: x.R |= {r for r in x.W if r[0] == "v"}
    preds = [dict() for _ in range(N)]
    def lat(p, c):
        if p.mfma:
            if c.mfma and {r for r in p.W} == c.C and not (p.W & (c.A | c.B)): return p.passes * 4
            return p.passes * 4 + 22
        if p.ds: return ds_lat
        if p.vmem: return vm_lat
        if p.trans: return 12
        return issue_cost(p)
    lastw = {}; readers = {}
    last_ds = None; last_vm = None; dsedge = {}
    for i, x in enumerate(ins):
        for r in x.R:
            if r in lastw:
                j = lastw[r]; preds[i][j] = max(preds[i].get(j, 0), lat(ins[j], x))
        for r in x.W:
            if r in lastw:
                j = lastw[r]; preds[i][j] = max(preds[i].get(j, 0), lat(ins[j], x) if (ins[j].ds or ins[j].vmem or ins[j].mfma) else 0)
            for j in readers.get(r, ()):
                if j != i: preds[i][j] = max(preds[i].get(j, 0), 0)
        isds = x.ds or (fence[i] and "lgkm" in x.line) or x.op == "s_barrier"
        isvm = x.vmem or (fence[i] and ("vmcnt" in x.line or "cbranch" in x.op)) or x.op == "s_barrier"
        if isds:
            if last_ds is not None: preds[i][last_ds] = max(preds[i].get(last_ds, 0), ds_lat if fence[i] else 0)
            if last_ds is not None and ins[last_ds].ds: dsedge[i] = last_ds
            last_ds = i
        if isvm:
            if last_vm is not None: preds[i][last_vm] = max(preds[i].get(last_vm, 0), vm_lat if (fence[i] and 'vmcnt' in x.line) else (0 if (fence[last_vm] or fence[i]) else vm_gap))
            last_vm = i
        for r in x.W:
            lastw[r] = i; readers[r] = []
        for r in x.R: readers.setdefault(r, []).append(i)
    succs = [[] for _ in range(N)]
    for i in range(N):
        for j, l in preds[i].items(): succs[j].append((i, l))
    height = [0] * N
    for i in reversed(range(N)):
        h = issue_cost(ins[i]) + (prio(lines[i], i) if prio else 0)
        for k, l in succs[i]: h = max(h, max(l, ds_busy(ins[i]) * ds_mul if dsedge.get(k) == i else 1) + height[k])
        height[i] = h
    schedule.times = []
    out = []; emitted = [I(l) for l in prev]
    done = [False] * N; tissue = [0] * N
    npred = [len(p) for p in preds]
    ready = [i for i in range(N) if npred[i] == 0]
    t = 0; mfree = -100; vfree = 0; dfree = 0; tdone = [0] * N
    dsq = []; vmq = []
    ds_done = 0; vm_done = 0
    def hz(c):
        d = 0; n = 0
        for p in reversed(emitted[-24:]):
            n = max(n, need(p, c) - d)
            d += p.states
            if d >= 20: break
        return n
    while ready:
        best = None
        for i in ready:
            x = ins[i]
            rt = max([(tdone[j] if l > 60 else tissue[j]) + l for j, l in preds[i].items()] + [0])
            if x.op.startswith("v_pk_") and "f32" in x.op: rt = max(rt, mfree + 10)
            if x.ds: rt = max(rt, dfree - ds_slack)
            if x.mfma: rt = max(rt, mfree)
            if x.vmem: rt = max(rt, vfree)
            rt = max(rt, t + 4 * hz(x))
            key = (max(rt - t, 0) > 3 and max(rt - t, 0), -height[i], i) if not inorder else (i,)
            if best is None or key < best[0]: best = (key, i, rt)
        _, i, rt = best
        x = ins[i]
        w = []
        nd = max([dsq.index(j) + 1 for j in preds[i] if ins[j].ds and (ins[j].W & (x.R | x.W))] + [0])
        if nd > ds_done:
            while merge and nd < len(dsq) and tdone[dsq[nd]] + merge <= max(t, rt): nd += 1
            w.append(f"lgkmcnt({min(14, len(dsq) - nd)})"); ds_done = nd if len(dsq) - nd <= 14 else len(dsq) - 14
        nv = max([vmq.index(j) + 1 for j in preds[i] if ins[j].vmem and (ins[j].W & (x.R | x.W))] + [0])
        if nv > vm_done:
            w.append(f"vmcnt({len(vmq) - nv})"); vm_done = nv
        if w:
            l = "s_waitcnt " + " ".join(w); out.append(l); emitted.append(I(l)); t += 4
        n = hz(x)
        if n > 0:
            l = f"s_nop {n-1}"; out.append(l); emitted.append(I(l)); t += 4 * n
        t = max(t, rt)
        tissue[i] = t; tdone[i] = t
        if x.ds:
            tdone[i] = max(t, dfree); dfree = tdone[i] + ds_busy(x) * ds_mul
        out.append(x.line if not lines[i].startswith("!") else lines[i][1:]); emitted.append(x)
        schedule.times.append((len(out) - 1, t))
        if x.ds: dsq.append(i)
        if x.vmem: vmq.append(i); vfree = t + vm_gap
        if fence[i] and "vmcnt(0)" in x.line: vm_done = len(vmq)
        if fence[i] and "lgkmcnt(0)" in x.line: ds_done = len(dsq)
        if x.mfma: mfree = t + x.passes * 4
        t += issue_cost(x)
        done[i] = True; ready.remove(i)
        for k, l in succs[i]:
            npred[k] -= 1
            if npred[k] == 0: ready.append(k)
    assert all(done)
    if verbose: print(f"schedule: {N} instrs, modelled {t} cycles")
    return out

schedule.merge = 0
```

```python
import sys, struct, math
from asmlib import *

NAME = "gated_mix__linear_kernel_hedgehog__sliding_block__prompt_kernel"
def f2u(x): return struct.unpack("<I", struct.pack("<f", x))[0]
def fx(x): return hex(f2u(x))
LOG2E = math.log2(math.e)

SLOT = 47104; WOFF = 16384; STG = 3 * SLOT; GWL = STG
HG = 25600
RA = 0; RB = 2 * HG
SCR = 6 * HG - 64; SCRW = 2560
LFLAG = 163776
C_SCR, C_A01, C_PRE, C_XCH, C_B01, C_GATE, C_HINT, C_B23, C_A23, C_POLL, C_POLC, C_KV, C_KVP = 0, 4, 8, 12, 16, 20, 24, 28, 32, 36, 40, 44, 48
F1A = 0x0; F2 = 0x4000; F1B = 0xc000; F3 = 0x1c000
GATE = 0x50000; KVP = 0x58000; KVP_SZ = 1920
KVB = 0x148000; KVB_SZ = 11264; W3F = 0x6c8000; OB = 0x6d0000; DBG = 0x1000000
SPIN = 2000000

def acc(tt, ft): return 128 + ft * 32 + tt * 4
MF32 = "v_mfma_f32_32x32x16_bf16"; MF16 = "v_mfma_f32_16x16x32_bf16"
def sp(txt): return [l.strip() for l in txt.split("\n") if l.strip() and not l.strip().startswith(";")]
DEFAULTS = dict(map=2, iw0=234, w3b=2, thr=4, thrA=2, w3a=6, dm=1, lam=8, nfs=14, gapB=60, f1=3, p1=18, c1=33, f2=22, nearly=4, psleep=5, mvs=1, merge=150)

def gen(opt):
    A = Asm()
    schedule.merge = opt.get("merge", 0)
    prof = opt.get("prof", 0); sset = opt.get("sset", 0); vb = opt.get("verbose", 0)
    def st(k, ss=0): return [f"s_memtime s[{80+2*k}:{81+2*k}]"] if (prof and ss == sset) else []
    def stamp(k, ss=0):
        for l in st(k, ss): A(l)
    def emit(L):
        for l in L:
            if l.endswith("; EX1"): A("s_mov_b64 exec, 1"); A(l[:-5]); A("s_mov_b64 exec, -1")
            else: A(l)
    def prevl(): return [l for l in A.lines[-24:] if not l.endswith(":")]
    apoll = "".join(c for k, c in enumerate("PHAB") if opt.get("ap", 0) >> k & 1)
    def poll(tag, areg, soff, dreg, lanes, wide=False, sleep=None, cmp=None, touch=None):
        if sleep is None: sleep = opt.get("psleep", 2)
        A(f"s_mov_b32 s29, 0\ns_mov_b64 exec, {'s[60:61]' if lanes == 32 else (-1 if lanes == 64 else hex((1 << lanes) - 1))}")
        at = tag[0] in apoll
        if at: A(f"v_mov_b32 v{dreg}, 0")
        A.label(f"L_poll{tag}")
        A(f"""
        {f'buffer_atomic_add v{dreg}, v{areg}, {soff} offen sc0' if at else f'buffer_load_dword v{dreg}, v{areg}, {soff} offen sc1'}
        s_add_u32 s29, s29, 1
        s_cmp_ge_u32 s29, {SPIN}
        s_cbranch_scc1 L_go{tag}
        s_waitcnt vmcnt(0)
        """)
        if wide: A(f"v_min_u32 v{dreg}, v{dreg}, v{dreg+1}\nv_min3_u32 v{dreg}, v{dreg}, v{dreg+2}, v{dreg+3}")
        A(f"""
        {cmp or f'v_cmp_eq_u32 vcc, 0, v{dreg}'}
        s_nop 0
        s_cbranch_vccz L_go{tag}
        """)
        if touch:
            A(f"s_andn2_b64 exec, exec, vcc\ns_cbranch_execz L_nt{tag}")
            emit(touch)
            A.label(f"L_nt{tag}")
        A("s_mov_b64 exec, vcc")
        if sleep: A(f"s_sleep {sleep}")
        A(f"s_branch L_poll{tag}")
        A.label(f"L_go{tag}")
        A("s_mov_b64 exec, -1")
    def lwait(tag, off, thr_=4, sleep=True, ar=2, hp=False):
        A("s_mov_b32 s29, 0")
        A.label(f"L_lw{tag}")
        A(f"""
        ds_read_b32 v6, v{ar} offset:{off}
        s_add_u32 s29, s29, 1
        s_lshr_b32 s31, s29, 21
        s_waitcnt lgkmcnt(0)
        {'s_setprio 3' if hp else ''}
        v_readfirstlane_b32 s28, v6
        {'s_setprio 0' if hp else ''}
        s_max_u32 s28, s28, s31
        s_cmp_ge_u32 s28, {thr_}
        s_cbranch_scc1 L_lg{tag}
        """)
        if sleep: A(f"s_sleep {2 if sleep is True else sleep}")
        A(f"s_branch L_lw{tag}")
        A.label(f"L_lg{tag}")
    A(f"""
    s_cmp_ge_u32 s2, 256
    s_cbranch_scc1 L_end
    s_load_dwordx8 s[36:43], s[0:1], 0
    s_load_dwordx8 s[44:51], s[0:1], 40
    s_load_dwordx4 s[52:55], s[0:1], 72
    """)
    if prof: A("s_memtime s[80:81]\ns_memrealtime s[98:99]")
    rp = opt.get("rp", 0)
    NINIT = 22
    sw = opt.get("sw", 0)
    gb = sw
    GWG = SCR + 1024
    IW0 = opt.get("iw0", 152)
    D0 = opt.get("d0", 4); DL = opt.get("dl", 5); hd = opt.get("hd", 0)
    p3m = 2
    eb = opt.get("eb", 0)
    A(f"""
    v_lshrrev_b32 v1, 6, v0
    v_and_b32 v0, 63, v0
    s_lshr_b32 s21, s2, 3
    v_readfirstlane_b32 s25, v1             ; wave
    s_and_b32 s20, s2, 7
    s_and_b32 s26, s21, 7
    """)
    pad = opt.get("pad", 0)
    if pad: A("s_cmp_eq_u32 s25, 1\ns_cbranch_scc1 L_pad")
    A("s_cmp_lg_u32 s25, 0\ns_cbranch_scc1 L_nocpf")
    A.label("L_cpf")
    A(f"""
    s_getpc_b64 s[28:29]
    s_mul_i32 s31, s26, 5120
    v_min_u32 v1, 39, v0
    v_lshl_add_u32 v1, v1, 7, s31
    v_min_u32 v2, L_A_slow-L_cpf, v1
    v_mov_b32 v3, 0
    v_lshl_add_u64 v[2:3], v[2:3], 0, s[28:29]
    global_load_dword v13, v[2:3], off
    """)
    A.label("L_nocpf")
    A(f"""
    s_and_b32 s57, s20, 1
    s_lshl3_add_u32 s22, s57, s26
    s_lshr_b32 s27, s21, 3
    s_and_b32 s23, s27, 1
    s_and_b32 s56, s20, 6
    s_lshr_b32 s28, s27, 1
    s_add_u32 s24, s56, s28
    s_and_b32 s35, s25, 3
    s_mov_b32 s6, 2621440
    s_mov_b32 s7, 0x20000
    s_mov_b32 s11, s7
    s_mov_b32 s15, s7
    s_mov_b32 s19, s7
    s_mov_b32 s75, s7
    s_cmp_lt_u32 s25, 4
    s_cbranch_scc1 L_cons
    """)
    def duty_calc(dbase, vr):
        return sp(f"""
        s_lshr_b32 s28, s21, 4
        s_lshl3_add_u32 s28, s28, s26           ; workgroup index in XCD group and branch
        """) + (sp(f"""
        s_lshr_b32 s3, s28, 2
        s_and_b32 s28, s28, 3
        s_mul_i32 s28, s28, 3
        s_add_u32 s28, s28, s35                 ; idx 0..11 (three waves per workgroup)
        s_cmp_eq_u32 s35, 3
        s_cselect_b32 s3, 10, s3
        s_add_u32 s3, s3, {dbase}
        """) if dbase == 6 else sp(f"""
        s_mul_i32 s3, s28, 86
        s_lshr_b32 s3, s3, 8                    ; /3
        s_mul_i32 s29, s3, 3
        s_sub_u32 s28, s28, s29
        s_lshl2_add_u32 s28, s28, s35           ; idx 0..11
        s_cmp_eq_u32 s3, 5
        s_cselect_b32 s3, 10, s3
        s_add_u32 s3, s3, {dbase}
        """)) + sp(f"""
        s_lshr_b32 s32, s20, 2                  ; p>>1
        s_bitcmp1_b32 s20, 1                    ; p odd
        s_cselect_b32 s29, 6, 9                 ; W slots
        s_cselect_b32 s30, 3, 0
        s_movk_i32 s71, 21846
        s_cselect_b32 s71, 0x8000, s71          ; 65536 / lines per segment
        s_movk_i32 s72, {1280-384}
        s_cselect_b32 s72, {1280-256}, s72
        s_sub_u32 s29, s28, s29                 ; x slot (negative: W slot)
        s_cselect_b32 s33, 0, 1
        s_cbranch_scc1 L_dW{dbase}
        s_cmp_ge_u32 s29, 5
        s_cselect_b32 s3, 10, s3
        s_add_u32 s29, s29, s30
        s_lshl3_add_u32 s29, s32, s29
        s_and_b32 s30, s20, 1
        s_lshl4_add_u32 s29, s30, s29           ; 64-row group
        s_mul_i32 s29, s29, {64*1280}
        s_lshl_b32 s30, s3, 7
        s_add_u32 s70, s29, s30
        v_mul_u32_u24 v{vr}, 1280, v0
        s_branch L_dX{dbase}
        L_dW{dbase}:
        s_mul_i32 s32, s32, 5
        s_add_u32 s30, s30, s32
        s_lshl_b32 s30, s30, 7
        s_mul_i32 s70, s3, 245760
        s_add_u32 s70, s70, s30
        s_lshl_b32 s28, s28, 6
        v_add_u32 v{vr}, s28, v0
        v_mul_u32_u24 v{vr+1}, s71, v{vr}
        v_lshrrev_b32 v{vr+1}, 16, v{vr+1}
        v_mul_u32_u24 v{vr+1}, s72, v{vr+1}
        v_lshl_add_u32 v{vr}, v{vr}, 7, v{vr+1}
        L_dX{dbase}:
        """)
    duty_srd = sp("""
        s_xor_b32 s28, s20, s3
        s_bitcmp1_b32 s28, 0
        s_cselect_b32 s72, s44, s38
        s_cselect_b32 s73, s45, s39
        s_cmp_lg_u32 s33, 0
        s_cselect_b32 s72, s36, s72
        s_cselect_b32 s73, s37, s73
        s_cselect_b32 s74, s6, 2457600
        """)
    xd = opt.get("xd", 3)
    ps = opt.get("ps", 0)
    parc = {0: "s_mov_b32 s58, 0", 1: "s_and_b32 s58, s26, 1", 2: "s_xor_b32 s58, s26, s27\n    s_and_b32 s58, s58, 1", 3: "s_xor_b32 s58, s26, s24\n    s_and_b32 s58, s58, 1"}[ps]
    p3ids = sp("""
    s_lshl2_add_u32 s56, s56, s26
    s_lshl2_add_u32 s57, s57, s27
    s_mov_b32 s14, 0x10000000
    s_mov_b32 s12, s54
    s_mov_b32 s13, s55
    """)
    stamp(6, 9)
    A(f"""
    s_setprio 2
    v_lshrrev_b32 v1, 3, v0
    s_lshl4_add_u32 s28, s22, s35
    s_mul_i32 s28, s28, {8*1280}
    v_mul_u32_u24 v1, 1280, v1
    s_lshl_b32 s29, s35, 2
    v_lshrrev_b32 v3, 4, v0
    v_xor_b32 v3, v3, v0
    v_xor_b32 v3, s29, v3
    v_and_b32 v3, 7, v3
    v_lshlrev_b32 v3, 4, v3
    v_add3_u32 v1, v3, v1, s28              ; x voffset
    v_mul_u32_u24 v6, 26, v0
    v_lshrrev_b32 v6, 8, v6
    v_cmp_le_u32 vcc, 30, v0
    v_mul_u32_u24 v6, {1280-160}, v6
    v_mov_b32 v5, {8*3840-3*1280}
    v_lshl_add_u32 v4, v0, 4, v6
    v_cndmask_b32 v5, 0, v5, vcc
    s_mul_i32 s28, s24, 160
    s_mul_i32 s63, s35, 960
    s_lshl2_add_u32 s28, s63, s28
    v_add3_u32 v2, v4, v5, s28              ; W voffset
    """)
    if pad: A("s_branch L_pad2\nL_pad:\ns_branch L_nocpf\nL_pad2:")
    A(f"""
    s_mov_b32 s10, 2457600
    s_mov_b32 s60, -1
    s_mov_b32 s61, 0x0fffffff
    s_lshl_b32 s62, s35, 10                 ; x m0 base
    s_add_u32 s63, s63, {WOFF}              ; W m0 base
    s_mov_b32 s65, 0
    s_mov_b32 s68, s26
    s_lshl_b32 s59, s27, 12
    s_mov_b32 s31, 0                        ; stage
    {parc}
    s_cmp_lg_u32 s23, {eb}
    s_cbranch_scc1 L_h_nd
    """)
    if xd & 1:
        emit(duty_calc(opt.get('d6', 0), 4))
        A("s_waitcnt lgkmcnt(0)"); emit(duty_srd)
        A("s_cmp_ge_u32 s3, 10\ns_cbranch_scc1 L_h_nd\nbuffer_load_dword v13, v4, s[72:75], s70 offen")
    else: A(f"""
    s_cmp_eq_u32 s35, 3
    s_cbranch_scc1 L_h_nd
    s_and_b32 s28, s2, 63
    s_lshr_b32 s29, s2, 7
    s_lshl_b32 s29, s29, 6
    s_add_u32 s28, s28, s29
    v_min_u32 v4, 39, v0
    v_mul_u32_u24 v5, 52, v4
    v_lshrrev_b32 v5, 8, v5
    s_cmp_eq_u32 s35, 0
    s_cselect_b32 s29, 32, 15
    s_cselect_b32 s30, 5, 0
    s_cselect_b32 s33, 16, 7
    s_cselect_b32 s74, s6, s10
    v_mad_u32_u24 v4, v5, s30, v4
    v_lshlrev_b32 v4, 7, v4
    s_mul_i32 s28, s28, s29
    s_add_u32 s29, s28, s33
    s_mulk_i32 s28, 640
    s_mulk_i32 s29, 640
    s_waitcnt lgkmcnt(0)
    s_cmp_eq_u32 s35, 1
    s_cselect_b32 s72, s38, s44
    s_cselect_b32 s73, s39, s45
    s_cmp_eq_u32 s35, 0
    s_cselect_b32 s72, s36, s72
    s_cselect_b32 s73, s37, s73
    buffer_load_dword v13, v4, s[72:75], s28 offen
    buffer_load_dword v13, v4, s[72:75], s29 offen
    """)
    A.label("L_h_nd")
    stamp(7, 9)
    A("""
    s_cmp_eq_u32 s23, 0
    s_waitcnt lgkmcnt(0)
    s_mov_b32 s4, s36
    s_mov_b32 s5, s37
    s_cselect_b32 s8, s38, s44
    s_cselect_b32 s9, s39, s45
    """)
    stamp(1, 9)
    lam = opt.get("lam", 6)
    nW = lam - 4
    def wdma(u):
        A(f"""
        s_mul_i32 s28, s68, 3840
        s_add_u32 m0, s69, s28
        s_and_b32 s29, s68, 1
        s_mul_i32 s29, s29, {4*3840}
        s_lshl3_add_u32 s28, s28, s67
        s_sub_u32 s28, s28, s29
        buffer_load_dwordx4 v2, s[8:11], s28 offen lds
        s_add_u32 s68, s68, 1
        s_and_b32 s68, s68, 7
        """)
    hb = opt.get("hb", 0)
    if hb:
        def xdma():
            A("s_mov_b64 exec, -1\ns_lshl_b32 s66, s31, 7\ns_add_u32 s64, s62, s65")
            for i in range(4):
                A(f"""
                s_add_u32 m0, s64, s59
                s_mul_i32 s28, s59, 10
                s_add_u32 s28, s28, s66
                buffer_load_dwordx4 v1, s[4:7], s28 offen lds
                s_add_u32 s59, s59, 4096
                s_and_b32 s59, s59, 0x3000
                """)
            A("s_mov_b64 exec, s[60:61]")
        def whalf():
            for u in range(4):
                n0 = len(A.lines); wdma(u); A.lines[-1] = "s_and_b32 s68, s68, 3"
        A("s_and_b32 s68, s68, 3")
        A.label("L_h_head")
        xdma()
        A(f"s_cmp_eq_u32 s31, 0\ns_cbranch_scc1 L_h_n1\ns_waitcnt vmcnt(8)\ns_setprio 0\ns_barrier")
        A.label("L_h_n1")
        A("s_mul_i32 s67, s31, 245760\ns_add_u32 s69, s63, s65")
        whalf()
        A(f"s_cmp_eq_u32 s31, 0\ns_cbranch_scc1 L_h_n2\ns_waitcnt vmcnt(8)\ns_barrier")
        A.label("L_h_n2")
        A(f"s_add_u32 s67, s67, {32*3840}\ns_add_u32 s69, s69, {4*3840}")
        whalf()
        A(f"""
        s_add_u32 s31, s31, 1
        s_add_u32 s65, s65, {SLOT}
        s_cmp_eq_u32 s65, {3*SLOT}
        s_cselect_b32 s65, 0, s65
        s_cmp_lt_u32 s31, 10
        s_cbranch_scc1 L_h_head
        s_mov_b64 exec, -1
        s_branch L_h_post
        """)
        sq = 0
    else:
        A.label("L_h_head")
        A("""
        s_xor_b32 s64, s31, s58
        s_lshl_b32 s66, s64, 7
        s_add_u32 s69, s62, s65
        """)
        for i in range(4):
            A(f"""
            s_add_u32 m0, s69, s59
            s_mul_i32 s28, s59, 10
            s_add_u32 s28, s28, s66
            buffer_load_dwordx4 v1, s[4:7], s28 offen lds
            s_add_u32 s59, s59, 4096
            s_and_b32 s59, s59, 0x3000
            """)
        A("s_mul_i32 s67, s64, 245760\ns_add_u32 s69, s63, s65\ns_mov_b64 exec, s[60:61]\ns_cmp_eq_u32 s31, 9\ns_cselect_b32 s68, 0, s68")
        for u in range(nW): wdma(u)
        if prof and sset == 9:
            A("s_cmp_gt_u32 s31, 1\ns_cbranch_scc1 L_x9\ns_cmp_eq_u32 s31, 1\ns_cbranch_scc1 L_y9")
            emit(st(2, 9)); A(f"s_waitcnt vmcnt({lam-1})"); emit(st(3, 9)); A("s_branch L_x9\nL_y9:"); emit(st(4, 9)); A(f"s_waitcnt vmcnt({lam})"); emit(st(5, 9)); A("L_x9:")
        assert gb == 0
        sq = opt.get("sq", 0)
        if sq:
            k0 = opt.get("sqk", 0); d0 = opt.get("sqd", 5)
            A(f"""
            s_sub_u32 s28, s31, {k0}
            s_cmp_ge_u32 s28, {10-d0}
            s_cbranch_scc1 L_h_nq
            s_add_u32 s28, s28, {d0}
            s_lshl2_add_u32 s29, s2, s35
            s_mul_i32 s76, s29, 2560
            s_lshl_b32 s77, s28, 7
            s_add_u32 s76, s76, s77
            s_add_u32 s76, s76, s36
            s_addc_u32 s77, s37, 0
            s_load_dword s3, s[76:77], 0
            s_load_dword s3, s[76:77], 64
            s_load_dword s3, s[76:77], 1280
            s_load_dword s3, s[76:77], 1344
            s_lshr_b32 s30, s29, 1
            s_min_u32 s30, s30, 479
            s_lshl_b32 s30, s30, 9
            s_mul_i32 s28, s28, 245760
            s_add_u32 s28, s28, s30
            s_bitcmp1_b32 s29, 0
            s_cselect_b32 s78, s44, s38
            s_cselect_b32 s79, s45, s39
            s_add_u32 s78, s78, s28
            s_addc_u32 s79, s79, 0
            """)
            for n in range(8): A(f"s_load_dword s3, s[78:79], {64*n}")
            A.label("L_h_nq")
        A(f"""
        s_cmp_eq_u32 s31, 0
        s_cbranch_scc1 L_h_tail
        s_waitcnt vmcnt({lam})
        s_setprio {opt.get("hp1", 0)}
        s_barrier
        """)
        A.label("L_h_tail")
        for u in range(nW, 8): wdma(u)
        A(f"""
        s_mov_b64 exec, -1
        s_add_u32 s31, s31, 1
        s_cmp_eq_u32 s31, 10
        s_cbranch_scc1 L_h_post
        s_add_u32 s65, s65, {SLOT}
        s_cmp_eq_u32 s65, {3*SLOT}
        s_cselect_b32 s65, 0, s65
        s_branch L_h_head
        """)

    A.label("L_cons")
    A(f"""
    s_setprio 1
    s_lshl_b32 s58, s24, 2
    s_add_u32 s58, s58, s25                 ; head
    s_lshl_b32 s28, s23, 5
    s_add_u32 s59, s28, s58
    v_lshrrev_b32 v65, 5, v0                ; h
    v_and_b32 v64, 31, v0                   ; i
    v_lshlrev_b32 v1, 4, v0
    s_mov_b32 s34, {SLOT}
    {parc.replace("s58", "s5")}
    s_waitcnt lgkmcnt(0)
    """)
    A(f"""
    s_cmp_lg_u32 s23, 0
    s_cbranch_scc1 L_nogw
    s_lshl_b32 s30, s25, 11
    s_add_u32 s30, s30, {GWL}
    s_mul_i32 s28, s58, 800
    s_mov_b32 s16, s40
    s_mov_b32 s17, s41
    s_add_u32 s18, s28, 800
    s_mov_b32 m0, s30
    v_add_u32 v57, s28, v1
    buffer_load_dwordx4 v57, s[16:19], 0 offen lds
    buffer_load_dwordx4 v57, s[16:19], 0 offen offset:1024 lds
    s_cmp_lg_u32 s25, 2
    s_cbranch_scc1 L_nogw
    s_mov_b32 s16, s48
    s_mov_b32 s17, s49
    s_mov_b32 m0, {GWG}
    s_mov_b32 s18, 1280
    buffer_load_dwordx4 v1, s[16:19], 0 offen lds
    buffer_load_dwordx4 v1, s[16:19], 0 offen offset:1024 lds
    """)
    A.label("L_nogw")
    emit(p3ids)
    def waddr(base, r=0):
        return sp(f"""
        v_lshrrev_b32 v{12+r}, 4, v0                ; g
        v_bfe_u32 v{10+r}, v0, 2, 2                 ; r
        v_and_b32 v{9+r}, 3, v0                     ; c
        v_lshlrev_b32 v{9+r}, 3, v{9+r}
        v_add_u32 v{9+r}, {base}, v{9+r}
        v_lshrrev_b32 v{11+r}, 5, v0
        v_mul_u32_u24 v{11+r}, 20, v{11+r}
        v_bfe_u32 v{6+r}, v0, 4, 1
        v_lshl_add_u32 v{11+r}, v{6+r}, 2, v{11+r}
        v_add_u32 v{11+r}, v{11+r}, v{10+r}                 ; 20*(g>>1) + 4*(g&1) + r
        v_mov_b32 v{7+r}, 160
        v_mad_u32_u24 v{8+r}, v{11+r}, v{7+r}, v{9+r}
        v_mad_u32_u24 v{11+r}, v{12+r}, 20, v{10+r}
        v_add_u32 v{11+r}, 16, v{11+r}                  ; 20g + 16 + r
        v_mad_u32_u24 v{9+r}, v{11+r}, v{7+r}, v{9+r}
        """)
    def oaddr_v(r=0):
        return sp(f"""
        v_and_b32 v{4+r}, 7, v0
        v_lshlrev_b32 v{5+r}, 7, v0
        v_bfe_u32 v{6+r}, v0, 3, 1                  ; p
        v_lshlrev_b32 v{11+r}, 4, v{4+r}
        v_lshl_add_u32 v{10+r}, v{6+r}, 10, v{11+r}
        v_bfe_u32 v{7+r}, v0, 4, 1
        v_lshl_add_u32 v{10+r}, v{7+r}, 9, v{10+r}
        v_lshrrev_b32 v{7+r}, 5, v0
        v_mul_u32_u24 v{7+r}, 2560, v{7+r}
        v_add_u32 v{10+r}, v{10+r}, v{7+r}
        v_lshrrev_b32 v{7+r}, 4, v0
        v_lshl_add_u32 v{7+r}, v{6+r}, 2, v{7+r}            ; head g + 4p
        v_mul_u32_u24 v{7+r}, 2560, v{7+r}
        v_add_u32 v{11+r}, v{11+r}, v{7+r}
        v_lshl_add_u32 v{4+r}, v{6+r}, 5, v{4+r}
        """)
    HV = SCR + 3072
    A("s_cmp_lg_u32 s25, 1\ns_cbranch_scc1 L_nohv\n; ---- wave 1: lane-dependent addresses the helper waves need after the GEMM")
    emit(waddr(RA, 32) + oaddr_v(32))
    A(f"""
    v_lshlrev_b32 v45, 2, v36
    v_mul_u32_u24 v36, 26, v0
    v_lshrrev_b32 v36, 8, v36
    v_mul_u32_u24 v36, {1280-160}, v36
    v_add_u32 v36, v36, v1
    v_min_u32 v38, 49, v0
    v_mul_u32_u24 v39, 52, v38
    v_lshrrev_b32 v39, 8, v39
    v_mul_u32_u24 v39, {640 if p3m == 2 else 0}, v39
    v_lshl_add_u32 v38, v38, 7, v39
    v_mov_b32 v39, v45
    v_add_u32 v44, {HV}, v1
    ds_write_b128 v44, v[36:39]
    ds_write_b128 v44, v[40:43] offset:1024
    """)
    A.label("L_nohv")
    A(f"""
    s_lshl_b32 s28, s25, 8
    s_or_b32 s33, s28, s2
    s_sub_u32 s33, s33, {IW0 + 3*256}
    s_cmp_ge_u32 s33, {NINIT}
    s_cbranch_scc1 L_noinit
    v_mov_b32 v60, 0
    v_mov_b32 v61, 0
    v_mov_b32 v62, 0
    v_mov_b32 v63, 0
    s_lshl_b32 s28, s33, 13
    s_add_u32 s29, s28, 4096
    buffer_store_dwordx4 v[60:63], v1, s[12:15], s28 offen offset:0 sc1
    buffer_store_dwordx4 v[60:63], v1, s[12:15], s28 offen offset:1024 sc1
    buffer_store_dwordx4 v[60:63], v1, s[12:15], s28 offen offset:2048 sc1
    buffer_store_dwordx4 v[60:63], v1, s[12:15], s28 offen offset:3072 sc1
    buffer_store_dwordx4 v[60:63], v1, s[12:15], s29 offen offset:0 sc1
    buffer_store_dwordx4 v[60:63], v1, s[12:15], s29 offen offset:1024 sc1
    buffer_store_dwordx4 v[60:63], v1, s[12:15], s29 offen offset:2048 sc1
    buffer_store_dwordx4 v[60:63], v1, s[12:15], s29 offen offset:3072 sc1
    """)
    A.label("L_noinit")
    if xd & 2:
        A("s_mov_b32 s31, s33")
        emit([l.replace("v13", "v57") for l in duty_calc(5 + opt.get('d6', 0), 12)] + duty_srd)
        A(f"s_mov_b32 s33, s31\ns_cmp_eq_u32 s23, {eb}\ns_cselect_b32 s3, 10, s3")
    else:
        A(f"""
        s_and_b32 s28, s2, 63
        s_lshr_b32 s29, s2, 7
        s_lshl_b32 s29, s29, 6
        s_add_u32 s28, s28, s29
        s_lshl2_add_u32 s28, s28, s25
        s_mul_i32 s3, s28, 5699
        s_lshr_b32 s3, s3, 19                   ; slot / 92
        s_mul_i32 s29, s3, 92
        s_sub_u32 s32, s28, s29                 ; idx 0..91
        s_add_u32 s3, s3, 5
        s_cmp_eq_u32 s23, {eb}
        s_cselect_b32 s3, 10, s3
        s_cmp_ge_u32 s3, {opt.get("sqd", 5) if sq else 10}
        s_cselect_b32 s3, 10, s3
        s_cmp_lt_u32 s32, 62
        s_cselect_b32 s28, 32, 62
        s_cselect_b32 s72, s38, s44
        s_cselect_b32 s73, s39, s45
        s_sub_u32 s28, s32, s28
        s_lshl_b32 s28, s28, 13
        s_mul_i32 s29, s3, 245760
        s_add_u32 s28, s28, s29
        s_mul_i32 s29, s32, {64*1280}
        s_lshl_b32 s30, s3, 7
        s_add_u32 s29, s29, s30
        s_cmp_lt_u32 s32, 32
        s_cselect_b32 s70, s29, s28
        s_movk_i32 s29, 1280
        s_cselect_b32 s71, s29, 128
        s_cselect_b32 s74, s6, 2457600
        s_cselect_b32 s72, s36, s72
        s_cselect_b32 s73, s37, s73
        """)
        A("v_mul_u32_u24 v12, s71, v0")
    IT_INIT, IT_DL, IT_DC, IT_W, IT_FL, IT_FC = opt.get("iti", 0), opt.get("itd", 6), opt.get("itd", 6) + 1, opt.get("itw", 5), 7, 8
    A(f"""
    s_mov_b32 s60, -1
    s_mov_b32 s61, 0
    v_bfrev_b32 v71, 1                      ; OOB
    v_cndmask_b32 v2, v71, v1, s[60:61]
    s_mul_i32 s28, s25, {SCRW}
    s_add_u32 s62, s28, {SCR}
    v_mul_u32_u24 v3, 48, v64
    v_add_u32 v3, s62, v3
    v_lshlrev_b32 v66, 3, v65
    v_sub_u32 v4, v3, v66
    v_add_u32 v4, 40, v4
    v_lshl_add_u32 v3, v65, 4, v3
    v_bfe_u32 v69, v0, 2, 2                 ; r
    v_lshl_add_u32 v69, v65, 2, v69
    v_bfe_u32 v70, v0, 4, 1
    v_and_b32 v66, 3, v0
    v_lshl_add_u32 v70, v70, 2, v66         ; sg = 4a + c
    v_min_u32 v66, 5, v70
    v_lshlrev_b32 v66, 3, v66
    v_mul_u32_u24 v5, 48, v69
    v_add3_u32 v5, v5, v66, s62
    v_mov_b32 v15, 0x3f803f80
    v_and_b32 v72, 15, v0
    v_lshlrev_b32 v72, 2, v72
    v_add_u32 v72, {LFLAG}, v72
    v_mov_b32 v74, 0
    ds_write_b32 v72, v74
    v_and_b32 v72, 15, v0                   ; i16
    v_lshrrev_b32 v73, 4, v0                ; g
    v_bfe_u32 v66, v0, 1, 3
    v_xor_b32 v66, v66, v73
    v_lshlrev_b32 v66, 4, v66
    v_lshl_add_u32 v8, v72, 7, v66
    v_xor_b32 v9, 64, v8
    v_bfe_u32 v66, v0, 2, 2                 ; r
    v_lshlrev_b32 v66, 1, v66
    v_bfe_u32 v67, v0, 4, 1
    v_add_u32 v66, v66, v67
    v_lshl_add_u32 v66, v65, 4, v66         ; 16*(g>>1) + 2r + (g&1)
    v_mul_u32_u24 v66, 480, v66
    s_mul_i32 s28, s25, 40
    s_add_u32 s28, s28, {WOFF}
    v_add_u32 v66, s28, v66
    v_and_b32 v68, 3, v0                    ; c
    v_lshl_add_u32 v10, v68, 3, v66
    v_and_b32 v67, 1, v68
    v_lshrrev_b32 v68, 1, v68
    v_add_u32 v68, 1, v68
    v_mul_u32_u24 v68, v68, v67
    v_mul_u32_u24 v68, 160, v68
    v_add3_u32 v11, v68, v66, 32
    s_lshl_b32 s29, s22, 7
    s_add_u32 s28, s59, s29
    s_mul_i32 s28, s28, 2560
    s_add_u32 s76, s28, {OB}
    s_add_u32 s77, s76, {64*2560}
    s_lshl3_add_u32 s28, s23, s24
    s_lshl_b32 s28, s28, 7
    s_lshl_b32 s29, s22, 11
    s_add_u32 s28, s28, s29
    s_add_u32 s78, s28, {F2}
    s_cmp_lt_u32 s33, {NINIT}
    s_cselect_b32 s35, {IT_INIT}, 20
    s_mov_b32 s79, 0
    s_bitset1_b32 s79, s35
    s_sub_u32 s28, s3, {D0+1}
    s_sub_u32 s3, s3, {DL}
    s_max_i32 s3, s3, 0
    s_cmp_lt_u32 s28, {9-D0}
    s_cselect_b32 s3, s3, 21
    s_bitset1_b32 s79, s3
    """)
    A("v_mov_b32 v76, 0\nv_mov_b32 v77, 0\nv_mov_b32 v78, 0\nv_mov_b32 v79, 0\ns_nop 1")
    for r in range(8): A(f"{MF32} {v(128+16*r,16)}, v[76:79], v[76:79], 0")
    cs = (20 ** -0.5) * LOG2E
    A(f"""
    s_mov_b32 s27, {F3-F1B}
    s_mov_b32 s8, s52                       ; s[8:11] = d_debug
    s_mov_b32 s9, s53
    s_mov_b32 s10, 256
    s_mov_b32 s31, 0
    s_mov_b32 s32, 0
    s_cmp_eq_u32 s23, 0
    s_cbranch_scc1 L_preA
    """)
    XB = [32, 64]; WB = [96, 112]
    def wr(st_, buf):
        return [f"ds_read_b64_tr_b16 {v(WB[buf]+4*ft+2*jj,2)}, v{10+(ft==3)} offset:{(32*st_+8*jj)*480 + (160*ft if ft<3 else 0)}" for ft in range(4) for jj in range(2)]
    def gr(R, st_, buf):
        if R == "A": A(f"s_mov_b64 exec, s[64:65]\nds_read_b128 {v(WB[buf]+12,4)}, v24 offset:{64*st_}\ns_mov_b64 exec, -1")
    def xr(st_, buf):
        return [f"ds_read_b128 {v(XB[buf]+4*tt,4)}, v{8+st_} offset:{tt*2048}" for tt in range(8)]
    def reads(st_, buf):
        X = xr(st_, buf); return [X[0]] + wr(st_, buf) + X[1:]
    def mf(buf, tt, ft): return f"{MF16} {v(acc(tt,ft),4)}, {v(WB[buf]+4*ft,4)}, {v(XB[buf]+4*tt,4)}, {v(acc(tt,ft),4)}"
    def mfmas(buf): return [mf(buf, tt, ft if tt % 2 == 0 else 3 - ft) for tt in range(8) for ft in range(4)]
    rts = prof and sset == 4
    def mainloop(R, extra):
        stamp(1, 9)
        A("s_waitcnt lgkmcnt(0)\ns_barrier")
        stamp(2, 9)
        if rts: A("s_memrealtime s[82:83]")
        emit(reads(0, 0)); gr(R, 0, 0)
        A.label(f"L_loop{R}")
        for st_ in range(2):
            M = mfmas(st_); Rd = reads(st_ ^ 1, st_ ^ 1)
            A("s_waitcnt lgkmcnt(0)")
            if st_ == 0:
                if rts: A("s_mov_b32 m0, s31\nv_writelane_b32 v2, s82, m0")
                nh = opt.get("hbpos", 14); X1 = xr(1, 1); W1 = wr(1, 1)
                for n in range(32):
                    A(M[n])
                    if hb:
                        if n < 8: A(X1[n])
                        if n == nh: A("s_barrier")
                        if nh <= n < nh + 8: A(W1[n - nh])
                    elif n < 16: A(Rd[n])
                    if n == (nh + 8 if hb else 16): gr(R, 1, 1)
                    if n == (nh + 10 if hb else 18) and R == "A": A("v_add_u32 v24, s4, v24\ns_sub_u32 s4, 256, s4")
                    if n == (10 if hb else 20):
                        A("s_bitcmp1_b32 s79, s31\ns_cbranch_scc1 L_side"); A.label(f"L_back{R}")
            else:
                A(M[0]); A("s_add_u32 s32, s32, 1\ns_cmp_eq_u32 s32, 3")
                A(M[1]); A(f"s_cselect_b32 s33, {-2*SLOT & 0xffffffff}, s34\ns_cselect_b32 s32, 0, s32")
                A(M[2])
                for r in range(8, 12):
                    A(f"v_add_u32 v{r}, s33, v{r}"); A(M[r-5])
                A("s_barrier")
                if rts: A("s_memrealtime s[82:83]")
                for n in range(7, 32):
                    if n - 7 < 16: A(Rd[n-7])
                    if n == 23: gr(R, 0, 0)
                    A(M[n])
                    if n == 29: A("s_add_u32 s31, s31, 1\ns_cmp_lt_u32 s31, 9")
                A(f"s_cbranch_scc1 L_loop{R}")
        M = mfmas(0); X = xr(1, 1); W = wr(1, 1)
        A("s_waitcnt lgkmcnt(0)")
        if rts:
            A(f"""
            v_writelane_b32 v2, s82, 9
            v_writelane_b32 v2, s98, 12
            s_lshl_b32 s28, s2, 2
            s_add_u32 s28, s28, s25
            s_lshl_b32 s28, s28, 8
            s_add_u32 s28, s28, {DBG+0x100000}
            v_lshlrev_b32 v8, 2, v0
            buffer_store_dword v2, v8, s[12:15], s28 offen
            v_bfrev_b32 v8, 1
            v_cndmask_b32 v2, v8, v1, s[60:61]
            """)
        nb = opt.get("b9pos", 16)
        for n in range(32):
            A(M[n])
            if n < 8: A(X[n])
            if n == nb: A("s_barrier                               ; b9b")
            if nb <= n < nb + 8: A(W[n - nb])
            if n == nb + 8: gr(R, 1, 1)
            if opt.get("mvs", 0) and n >= 9 and not nb <= n <= nb + 8 and extra: A(extra.pop(0))
        A("s_waitcnt vmcnt(0) lgkmcnt(0)\ns_barrier")
        stamp(1); stamp(1, 7)

    def conv(t, ft, da, db):
        a = acc(2*t, ft); b = acc(2*t+1, ft)
        return [f"v_cvt_pk_bf16_f32 v{da}, v{a}, v{a+1}", f"v_cvt_pk_bf16_f32 v{db}, v{b}, v{b+1}",
                f"v_cvt_pk_bf16_f32 v{da+1}, v{a+2}, v{a+3}", f"v_cvt_pk_bf16_f32 v{db+1}, v{b+2}, v{b+3}",
                f"v_permlane16_swap_b32 v{da}, v{db}", f"v_permlane16_swap_b32 v{da+1}, v{db+1}"]
    lastk = [mf(1, tt, ft) for tt in range(8) for ft in (3, 2, 1)] + [mf(1, tt, 0) for tt in range(8)]
    K1 = [32 + 4*u for u in range(4)]
    K2d = [48 + 2*u for u in range(4)]
    def vrows(q, l, k2):
        return [f"v_cndmask_b32 v{l}, v{k2}, v15, s[60:61]", f"v_cndmask_b32 v{l+1}, v{k2+1}, v15, s[60:61]",
                f"ds_write_b128 v3, {v(q,4)}", f"ds_write_b64 v4, {v(l,2)}"]
    def signal(r, off): return [f"v_mov_b32 v{r}, {LFLAG}", f"ds_add_u32 v{r}, v13 offset:{off} ; EX1"]
    GLO = f2u(2.0**-40); GHI = f2u(2.0**40)
    def o_fin(O, den, PM, PL, t, pk=True, chk=None, left=None):
        L = []
        if chk is not None:
            L += [f"v_add_u32 v{O[t]+13}, {hex((-GLO) & 0xffffffff)}, v{den}", f"v_max_u32 v{chk}, v{chk}, v{O[t]+13}"]
        L.append(f"v_rcp_f32 v{den}, v{den}")
        for n in range(6):
            if pk: L.append(f"v_pk_mul_f32 {v(O[t]+2*n,2)}, {v(O[t]+2*n,2)}, {v(den,2)} op_sel_hi:[1,0]")
            else: L += [f"v_mul_f32 v{O[t]+2*n}, v{O[t]+2*n}, v{den}", f"v_mul_f32 v{O[t]+2*n+1}, v{O[t]+2*n+1}, v{den}"]
        for n in range(4): L.append(f"v_cvt_pk_bf16_f32 v{PM+4*t+n}, v{O[t]+2*n}, v{O[t]+2*n+1}")
        L.append(f"buffer_store_dwordx4 {v(PM+4*t,4)}, v1, s[12:15], s{76+(t>>1)} offen offset:{(t&1)*1024} sc1")
        for n in range(2): L.append(f"v_cvt_pk_bf16_f32 v{PL+2*t+n}, v{O[t]+8+2*n}, v{O[t]+9+2*n}")
        if left if left is not None else (t & 1):
            L.append(f"buffer_store_dwordx4 {v(PL+4*(t>>1),4)}, v2, s[12:15], s{76+(t>>1)} offen offset:2048 sc1")
        return L

    A(f"""
    v_lshlrev_b32 v66, 2, v65
    v_sub_u32 v66, v64, v66                 ; i - 4h
    v_mov_b32 v67, 0xff800000
    """)
    for vv in range(16):
        kk = 8 * (vv >> 2) + (vv & 3)
        A(f"v_subrev_u32 v{16+vv}, {kk}, v66\nv_and_b32 v{16+vv}, v67, v{16+vv}")
    A(f"""
    v_bfe_u32 v66, v0, 4, 1
    v_mov_b32 v14, {fx(cs)}
    v_cndmask_b32 v14, 0, v14, s[60:61]
    v_cmp_eq_u32 vcc, 1, v66
    s_mov_b32 s64, {fx(cs)}
    s_mov_b32 s65, {fx(cs)}
    v_cndmask_b32_e64 v14, v14, 1.0, vcc
    v_min_u32 v6, 23, v64
    v_mad_u32_u24 v6, v65, 24, v6
    v_cmp_ge_u32 vcc, 23, v64
    v_lshlrev_b32 v6, 4, v6
    s_lshl_b32 s28, s58, 4
    v_cndmask_b32 v7, v71, v6, vcc
    s_add_u32 s28, s28, s22
    s_mul_i32 s66, s28, {KVB_SZ}
    s_add_u32 s66, s66, {KVB}
    s_add_u32 s67, s66, 4096
    s_add_u32 s68, s66, 5120
    s_add_u32 s69, s66, {5120+4*768}
    s_sub_u32 s36, s66, {KVB_SZ}
    s_cmp_ge_u32 s22, 2
    s_cselect_b32 s37, {KVB_SZ}, 0
    s_movk_i32 s39, 128
    s_cselect_b32 s39, 256, s39
    s_lshl_b32 s28, {'s24' if opt.get("bf", 0) else 's58'}, 11
    s_lshl_b32 s29, s22, 7
    s_add_u32 s28, s28, s29
    s_add_u32 s63, s28, {F1B}
    s_sub_u32 s38, s63, 128
    s_sub_u32 s39, s63, s39
    """)
    if gb == 1: A("s_cmp_lg_u32 s25, 2\ns_cbranch_scc1 L_nogw\ns_waitcnt vmcnt(0)\nL_nogw:")
    setB = sp(f"""
    v_bfrev_b32 v12, 1
    v_writelane_b32 v12, s63, 0
    v_bfrev_b32 v8, 1
    v_writelane_b32 v8, s38, 0
    v_writelane_b32 v8, s39, 1
    v_mov_b32 v9, {LFLAG}
    s_nop 0
    v_and_b32 v11, 0x1f0, v1
    v_mov_b32 v10, 0
    s_nop 0
    s_nop 0
    v_mov_b32 v58, 0
    v_mov_b32 v59, 0
    """)
    mainloop("B", setB)
    setB = [l for l in setB if l != "s_nop 0"]
    Q2d = [56, 60, 62, 66]; Q2op = [56, 58, 62, 64]
    VT = [68 + 8*u for u in range(4)]
    VQ = [100, 104]; VL = [108, 110]
    Q1 = [112 + 4*t for t in range(4)]
    S = [176, 160]; O = [192 + 16*t for t in range(4)]; P = 128; MASK = 16
    BCHK = 10
    def segment(pairs, hooks):
        L = []; started = set()
        def qk(n):
            t, u, m = pairs[n]; sb = S[n & 1]; k2 = K2d[u] - (2 if t & 1 else 0)
            return (f"{MF32} {v(sb,16)}, {v(K1[u],4)}, {v(Q1[t],4)}, {v(MASK,16) if m else 0}",
                    f"{MF32} {v(sb,16)}, {v(k2,4)}, {v(Q2op[t],4)}, {v(sb,16)} ; junk {v(k2 if t & 1 else k2+2, 2)}")
        def pv(n, c):
            t, u, m = pairs[n]
            first = (c == 0 and t not in started); started.add(t)
            return f"{MF32} {v(O[t],16)}, {v(VT[u]+4*c,4)}, {v(P+4*c,4)}, {0 if first else v(O[t],16)}"
        def grp(n, g):
            sb = S[n & 1] + 4*g
            for r in range(4): L.append(f"v_exp_f32 v{sb+r}, v{sb+r}")
            L.append(f"v_cvt_pk_bf16_f32 v{P+2*g}, v{sb}, v{sb+1}")
            L.append(f"v_cvt_pk_bf16_f32 v{P+2*g+1}, v{sb+2}, v{sb+3}")
        N = len(pairs)
        first2 = list(qk(0))
        for n in range(N):
            if n + 1 < N:
                a, b = qk(n + 1); L.append(a)
            L += hooks.get((n, 0), [])
            grp(n, 0)
            if n + 1 < N: L.append(b)
            L += hooks.get((n, 1), [])
            grp(n, 1)
            if n > 0: L.append(pv(n - 1, 1))
            L += hooks.get((n, 2), [])
            grp(n, 2)
            L.append(pv(n, 0))
            L += hooks.get((n, 3), [])
            grp(n, 3)
            L += hooks.get((n, 4), [])
        L.append(pv(N - 1, 1))
        return first2, L
    TO = (3, 2, 1, 0)
    blk = [mf(1, tt, ft) for tt in reversed(range(8)) for ft in (3, 2, 1, 0)]
    blk += setB + ["v_mov_b32 v64, 0", "v_mov_b32 v65, 0", "v_mov_b32 v13, 1"]
    def scale(r, pk, src):
        if pk: return [f"v_pk_mul_f32 {v(r,2)}, {v(r,2)}, " + ("v[14:15] op_sel_hi:[1,0]" if src == "v" else "s[64:65]")]
        return [f"v_mul_f32 v{r+e}, {'v14' if src == 'v' else 's64'}, v{r+e}" for e in range(2)]
    npk = opt.get("npkB", 2)
    for k, t in enumerate(TO):
        for tt in (2*t, 2*t+1):
            for n in range(2): blk += scale(acc(tt,3)+2*n, k >= npk, "v")
        blk += conv(t, 3, Q2d[t], K2d[t]) + conv(t, 2, VQ[t&1], VQ[t&1]+2)
        blk += vrows(VQ[t&1], VL[t&1], K2d[t])
        blk += [f"ds_read_b64_tr_b16 {v(VT[t]+4*cc+2*jj,2)}, v5 offset:{(16*cc+8*jj)*48}" for cc in range(2) for jj in range(2)]
        blk += conv(t, 1, K1[t], K1[t]+2)
    def stK1(t): return [f"buffer_store_dwordx4 {v(K1[t],4)}, v1, s[12:15], s66 offen offset:{t*1024} sc1"]
    def stK2(p): return [f"buffer_store_dwordx4 {v(K2d[2*p],4)}, v2, s[12:15], s67 offen offset:{p*512} sc1"]
    def stVT(t): return [f"buffer_store_dwordx4 {v(VT[t]+4*cc,4)}, v7, s[12:15], s{68+(t>>1)} offen offset:{((t&1)*2+cc)*768} sc1" for cc in range(2)]
    stores = []
    for t in TO: stores += stK1(t) + (stK2(t >> 1) if not t & 1 else []) + stVT(t)
    nfs = opt.get("nfs", 10)
    blk += stores[:nfs]
    for t in TO:
        for tt in (2*t, 2*t+1):
            for n in range(2): blk += scale(acc(tt,0)+2*n, True, "s")
        blk += conv(t, 0, Q1[t], Q1[t]+2)
    blk += signal(9, C_SCR)[1:]
    blk.append("!s_waitcnt lgkmcnt(0)")
    pairs = [(t, u, t == u) for u in TO for t in range(u, 4)] + [(t, u, False) for u in TO for t in range(4)] \
          + [(t, u, t == u) for u in TO for t in range(u, -1, -1)]
    def ldK1(u): return [f"buffer_load_dwordx4 {v(K1[u],4)}, v1, s[12:15], s66 offen offset:{u*1024} sc1"]
    def ldK2(p): return [f"buffer_load_dwordx4 {v(K2d[2*p],4)}, v11, s[12:15], s67 offen offset:{p*512} sc1"]
    def ldVT(u): return [f"buffer_load_dwordx4 {v(VT[u]+4*cc,4)}, v6, s[12:15], s{68+(u>>1)} offen offset:{((u&1)*2+cc)*768} sc1" for cc in range(2)]
    hooks = {}
    def hk(q, L): hooks.setdefault((q // 5, q % 5) if isinstance(q, int) else q, []).extend(L)
    sstep = opt.get("sstep", 2)
    for k, l in enumerate(stores[nfs:]):
        q = k * sstep
        hk((q // 4, q % 4), [l])
    assert nfs == 14
    f1 = opt.get("f1", 0); p1 = opt.get("p1", 13); f2 = opt.get("f2", 17); c1 = opt.get("c1", 26)
    p2 = opt.get("p2", 50); c2 = opt.get("c2", 61)
    assert f1 < p1 < c1 and f1 < f2 < c1 and c1 >= 18
    bf = opt.get("bf", 0); fd = 2 if bf else 0
    def bflag(q, wait, soff, cnt):
        if not bf:
            hk(q, [wait, f"buffer_store_dword v13, v12, s[12:15], {soff} offen sc1"]); return
        hk(q, [wait, f"ds_add_rtn_u32 v102, v100, v13 offset:{cnt} ; EX1"])
        hk(q + fd, ["v_subrev_u32 v102, 3, v102", "v_and_or_b32 v102, v102, v103, v12", f"buffer_store_dword v13, v102, s[12:15], {soff} offen sc1"])
    if bf: hk(0, [f"v_mov_b32 v100, {LFLAG}", "v_bfrev_b32 v103, 1"])
    assert f1 + fd < min(p1, f2) and f2 + fd < c1 and p1 != f2
    bflag(f1, "!s_waitcnt vmcnt(7)", "0", C_KV)
    hk(p1, ["buffer_load_dword v9, v8, s[12:15], 0 offen sc1"])
    bflag(f2, f"!s_waitcnt vmcnt({2 if p1 <= f2 else 1})", "s27", C_KVP)
    setsrc = lambda r: [f"s_add_u32 s67, {r}, 4096", f"s_add_u32 s68, {r}, 5120", f"s_add_u32 s69, {r}, {5120+4*768}"]
    first7 = ldK1(3) + ldK2(1) + ldVT(3) + ldK1(2) + ldVT(2)
    hk(c1, sp("""
        v_cmp_eq_u32 vcc, 0, v9
        s_cmp_eq_u32 s22, 0
        s_cselect_b32 s28, 1, vcc_lo
        s_and_b32 s79, s28, 1
        s_cbranch_scc1 L_B_skip
        s_mov_b32 s66, s36
        """) + setsrc("s36") + first7 + ["L_B_skip:"])
    hk((8, 4), st(3) + ["s_cmp_lg_u32 s79, 0", "s_cbranch_scc1 L_B_wait", "L_B_go:"] + [f"v_xor_b32 v{MASK+vv}, 0xff800000, v{MASK+vv}" for vv in range(16)] + st(4))
    hk((9, 4), ["s_cmp_eq_u32 s22, 0", "s_cbranch_scc1 L_B_x0"])
    hk(p2, ["buffer_load_dword v9, v8, s[12:15], s27 offen sc1"])
    hk(c2, ["v_cmp_eq_u32 vcc, 0, v9", "s_nop 0", "s_and_b32 s28, vcc_lo, 3", "s_cbranch_scc1 L_B_wait2", "L_B_go2:"] + ldK1(1) + ldK2(0))
    hk(c2 + 2, ldVT(1)); hk(c2 + 4, ldK1(0)); hk(c2 + 6, ldVT(0) + [f"s_sub_u32 s{r}, s{r}, s37" for r in range(66, 70)])
    assert c2 + 6 < 72
    hk((opt.get("sigB", 10), 1), signal(100, C_HINT))
    for k, u in enumerate(TO):
        n = 14 + 4*k
        hk((n, 2), ldK1(u) + (ldK2(u >> 1) if not u & 1 else [])); hk((n, 3), ldVT(u))
    hk((25, 4), st(5) + ["s_cmp_eq_u32 s22, 1", "s_cbranch_scc1 L_B_x1"])
    for t, n in ((3, 28), (2, 32), (1, 35)):
        F = o_fin(O, O[t] + 12, 136, 152, t, pk=False, chk=BCHK, left=(t == 2))
        q = (len(F) + 3) // 4
        for k in range(4): hk((n, k), F[k*q:(k+1)*q])
    for k, n in enumerate((9, 10, 13, 17, 21, 25, 30)): hk((n, 0), st(1 + k, 3))
    for k, n in enumerate((0, 1, 2, 4, 5, 6, 8, 9)): hk((n, 0), st(1 + k, 8))
    first2, seg = segment(pairs, hooks)
    sch = schedule(blk + first2, prio=lambda l, i: 100 if "buffer_store" in l else (150 if "32x32" in l else 0), vm_gap=opt.get("gapB", 90), prev=prevl(), verbose=vb)
    if prof and sset == 7:
        tm = dict(schedule.times); pos = [33*k for k in range(1, 8)]
        print("B model t at", [(p, max(t for i, t in tm.items() if i <= p)) for p in pos], "len", len(sch))
        for k, p in reversed(list(enumerate(pos))): sch[p:p] = st(k + 2, 7)
    emit(sch)
    stamp(2)
    x1_pv = f"{MF32} {v(O[3],16)}, {v(VT[0]+4,4)}, {v(P+4,4)}, {v(O[3],16)}"
    seg += st(6) + st(8, 3) + o_fin(O, O[0] + 12, 136, 152, 0, chk=BCHK, left=True)
    emit(schedule(seg, inorder=True, prev=prevl(), verbose=vb))
    A.label("L_B_chk")
    A(f"""
    v_cmp_le_u32 vcc, {hex(GHI-GLO)}, v{BCHK}
    s_nop 0
    s_cbranch_vccz L_P3c
    s_cmp_lg_u32 s79, 9
    s_cbranch_scc1 L_B_slow
    s_branch L_P3c
    """)
    A.label("L_B_wait")
    A("s_cmp_eq_u32 s22, 0\ns_cbranch_scc1 L_B_go")
    poll("B", 8, "s[12:15], 0", 9, 1)
    A("s_mov_b32 s66, s36"); emit(setsrc("s36") + first7)
    A("s_branch L_B_go")
    A.label("L_B_wait2")
    poll("B2", 8, "s[12:15], s27", 9, 2)
    A("s_branch L_B_go2")
    A.label("L_B_x0")
    emit(signal(9, C_HINT))
    A.label("L_B_x1")
    A("s_nop 1"); A(x1_pv)
    A.label("L_B_fin4")
    blk = []
    for t in range(4): blk += o_fin(O, O[t] + 12, 136, 152, t, chk=BCHK)
    emit(schedule(blk, prev=[x1_pv], inorder=True, verbose=vb))
    A("s_branch L_B_chk")

    A.label("L_side")
    A(f"""
    s_waitcnt vmcnt(0)
    s_cmp_lg_u32 s31, s35
    s_cbranch_scc1 L_side4
    s_sub_u32 s28, s2, {IW0}
    s_mul_i32 s28, s28, {opt.get("dst", 12)}
    s_mov_b64 exec, 1
    buffer_store_dword v15, v0, s[8:11], s28 offen sc1
    s_mov_b64 exec, -1
    """)
    A.label("L_side4")
    A("""
    s_cmp_lg_u32 s31, s3
    s_cbranch_scc1 L_side5
    buffer_load_dword v13, v12, s[72:75], s70 offen
    """)
    A.label("L_side5")
    A("s_cmp_lg_u32 s23, 0\ns_cbranch_scc1 L_backB\ns_branch L_backA")

    A.label("L_preA")
    A(f"""
    v_lshrrev_b32 v66, 3, v64               ; q
    v_bfe_u32 v67, v64, 2, 1                ; h'
    v_and_b32 v68, 3, v64                   ; r
    v_lshl_add_u32 v72, v66, 2, v68         ; vv = 4q+r
    v_mad_u32_u24 v73, v67, 10, v72         ; f
    s_lshl_b32 s28, s25, 11
    s_add_u32 s30, s28, {GWL}
    v_lshl_add_u32 v73, v73, 1, s30
    v_mul_u32_u24 v75, 320, v65
    v_cmp_gt_u32 vcc, 10, v72
    s_add_u32 s28, s30, 1024
    v_mov_b32 v74, s28
    v_add_u32 v75, v75, v73
    v_cndmask_b32 v75, v74, v75, vcc
    v_cndmask_b32 v73, v74, v73, vcc
    v_cndmask_b32 v73, v74, v73, s[60:61]
    v_and_b32 v24, 0x30, v0
    s_lshl_b32 s29, s5, 7
    s_add_u32 s29, s29, {GWG}
    v_add_u32 v24, s29, v24
    s_lshl_b32 s4, s5, 8
    s_sub_u32 s4, 128, s4
    v_subrev_u32 v25, 32, v0
    v_cmp_gt_u32 vcc, 16, v25
    v_lshlrev_b32 v25, 2, v25
    s_cmp_eq_u32 s25, 0
    s_cselect_b64 vcc, vcc, 0
    v_cndmask_b32 v25, v71, v25, vcc
    s_mov_b32 s64, 0x0f000f00
    s_mov_b32 s65, 0x0f000f00
    s_lshl3_add_u32 s69, s22, s24
    s_lshl_b32 s69, s69, 6
    s_add_u32 s69, s69, {GATE}
    s_lshl_b32 s27, s24, 2
    v_mov_b32 v74, 99
    v_cmp_eq_u32 vcc, v65, v67
    v_and_b32 v30, 1, v72
    v_lshlrev_b32 v30, 4, v30
    v_cndmask_b32 v72, v74, v72, vcc
    v_mov_b32 v74, 0x3f80
    v_lshlrev_b32 v30, v30, v74
    v_lshrrev_b32 v31, 1, v72
    v_mul_u32_u24 v6, 80, v64
    v_mul_u32_u24 v66, 40, v65
    v_add3_u32 v6, v6, v66, s62
    v_and_b32 v66, 1, v70                   ; h'
    v_mul_u32_u24 v66, 40, v66
    v_mul_u32_u24 v14, 80, v69
    v_add3_u32 v14, v14, v66, s62
    v_lshrrev_b32 v66, 1, v70               ; q
    v_lshl_add_u32 v7, v66, 3, v14
    v_mul_u32_u24 v66, 960, v65
    v_lshl_add_u32 v28, v64, 4, v66
    v_cmp_ge_u32 vcc, 23, v64
    v_lshl_add_u32 v29, v64, 3, v66
    s_lshl_b32 s28, s58, 4
    v_cndmask_b32 v28, v71, v28, vcc
    v_cndmask_b32 v29, v71, v29, vcc
    s_mul_i32 s66, s28, {KVP_SZ}
    s_add_u32 s66, s66, {KVP}
    s_mul_i32 s67, s22, {KVP_SZ}
    s_add_u32 s67, s67, s66
    s_lshl_b32 s28, {'s24' if opt.get("af", 2) else 's58'}, 11
    s_add_u32 s68, s28, {F1A}
    s_lshl_b32 s29, s22, 7
    s_add_u32 s63, s68, s29
    """)
    A("s_waitcnt vmcnt(0)")
    blk = [f"ds_read_u16 v{40+j}, v{75 if j < 8 else 73} offset:{(j if j < 8 else j + 8)*40}" for j in range(12)]
    blk += ["v_mov_b32 v22, 0", "v_mov_b32 v23, 0"]
    for j in range(12):
        blk += [f"v_lshlrev_b32 v{40+j}, 16, v{40+j}", f"v_mul_f32 v{40+j}, {fx(LOG2E)}, v{40+j}"]
        if j & 1: blk.append(f"v_cvt_pk_bf16_f32 v{16+(j>>1)}, v{39+j}, v{40+j}")
    emit(schedule(blk, inorder=True))
    setA = sp("v_bfrev_b32 v12, 1\nv_writelane_b32 v12, s63, 0")
    mainloop("A", setA)
    Q2a = [56 + 2*t for t in range(4)]
    AVQ = [64 + 4*t for t in range(4)]; Q1a = [80 + 4*t for t in range(4)]
    FS = [96, 108]; AVL = [120, 122]
    PT = [160, 176]; KV0, KV1 = 192, 208; EB = [224, 234]; PK = 244
    PQ = [128, 138, 148, 244]
    ACHK = 10
    def premfma(t, op1, op2):
        return [f"{MF32} {v(PT[t&1],16)}, v[16:19], {v(op1,4)}, 0",
                f"{MF32} {v(PT[t&1],16)}, v[20:23], {v(op2,4)}, {v(PT[t&1],16)} ; junk {v(op2+2,2)}"]
    def softmax2(t, dst, slow):
        p = PT[t & 1]; E = EB[t & 1]; c, d = p + 10, p + 12
        L = []
        if slow:
            L += [f"v_max3_f32 v{c}, v{p}, v{p+1}, v{p+2}", f"v_max3_f32 v{d}, -v{p}, -v{p+1}, -v{p+2}"]
            for n in (3, 5, 7):
                L += [f"v_max3_f32 v{c}, v{c}, v{p+n}, v{p+n+1}", f"v_max3_f32 v{d}, v{d}, -v{p+n}, -v{p+n+1}"]
            L += sp(f"""
            v_max_f32 v{c}, v{c}, v{p+9}
            v_max_f32_e64 v{d}, v{d}, -v{p+9}
            v_permlane32_swap_b32 v{c}, v{d}
            v_max_f32 v{c}, v{c}, v{d}
            v_mov_b32 v{d}, v{c}
            v_permlane32_swap_b32 v{c}, v{d}
            """)
            for n in range(10):
                L += [f"v_add_f32 v{E+n}, v{p+n}, v{d}", f"v_sub_f32 v{p+n}, v{p+n}, v{c}",
                      f"v_exp_f32_e64 v{E+n}, -v{E+n}", f"v_exp_f32 v{p+n}, v{p+n}"]
        else:
            for n in range(10): L += [f"v_exp_f32_e64 v{E+n}, -v{p+n}", f"v_exp_f32 v{p+n}, v{p+n}"]
        L += [f"v_pk_add_f32 {v(c,2)}, {v(p,2)}, {v(p+2,2)}", f"v_pk_add_f32 {v(d,2)}, {v(E,2)}, {v(E+2,2)}"]
        for n in (4, 6, 8):
            L += [f"v_pk_add_f32 {v(c,2)}, {v(c,2)}, {v(p+n,2)}", f"v_pk_add_f32 {v(d,2)}, {v(d,2)}, {v(E+n,2)}"]
        L += sp(f"""
        v_add_f32 v{c}, v{c}, v{c+1}
        v_add_f32 v{d}, v{d}, v{d+1}
        v_permlane32_swap_b32 v{c}, v{d}
        v_add_f32 v{c}, v{c}, v{d}
        """)
        if not slow: L.append(f"v_max_u32 v{ACHK}, v{ACHK}, v{c}")
        L += sp(f"""
        v_rcp_f32 v{c}, v{c}
        v_mov_b32 v{d}, v{c}
        v_permlane32_swap_b32 v{c}, v{d}
        """)
        for n in range(10):
            r = p + 2*n if n < 5 else E + 2*n - 10
            L.append(f"v_pk_mul_f32 {v(r,2)}, {v(r,2)}, {v(c if n < 5 else d,2)} op_sel_hi:[1,0]")
            L.append(f"v_cvt_pk_bf16_f32 v{dst+n}, v{r}, v{r+1}")
        return L
    def kside(slow):
        L = []
        for t in range(4):
            L += premfma(t, K1[t], K2d[t])
            L += softmax2(t, PK, slow)
            L += vrows(AVQ[t], AVL[t&1], K2d[t])
            L += [f"ds_read_b64_tr_b16 {v(FS[cc]+8+2*jj,2)}, v5 offset:{(16*cc+8*jj)*48}" for cc in range(2) for jj in range(2)]
            L += [f"ds_write_b64 v6, {v(PK+2*n,2)} offset:{8*n}" for n in range(5)]
            for cc in range(2):
                for jj in range(2):
                    ro = (16*cc + 8*jj) * 80
                    L += [f"ds_read_b64_tr_b16 {v(FS[cc]+2*jj,2)}, v7 offset:{ro}", f"ds_read_b64_tr_b16 {v(FS[cc]+4+2*jj,2)}, v14 offset:{ro+32}"]
            for cc in range(2):
                first = (t == 0 and cc == 0)
                L.append(f"{MF32} {v(KV0,16)}, {v(FS[cc],4)}, {v(FS[cc]+8,4)}, {0 if first else v(KV0,16)}")
                L.append(f"{MF32} {v(KV1,16)}, {v(FS[cc]+4,4)}, {v(FS[cc]+8,4)}, {0 if first else v(KV1,16)}")
        for n in range(8): L.append(f"v_cvt_pk_bf16_f32 v{PK+n}, v{KV0+2*n}, v{KV0+2*n+1}")
        for n in range(2): L.append(f"v_cvt_pk_bf16_f32 v{PK+8+n}, v{KV1+2*n}, v{KV1+2*n+1}")
        L += sp(f"""
        buffer_store_dwordx4 {v(PK,4)}, v28, s[12:15], s67 offen sc1
        buffer_store_dwordx4 {v(PK+4,4)}, v28, s[12:15], s67 offen offset:576 sc1
        buffer_store_dwordx2 {v(PK+8,2)}, v29, s[12:15], s67 offen offset:384 sc1
        """)
        return L
    def qside(slow):
        L = []
        for t in range(4): L += premfma(t, Q1a[t], Q2a[t]) + softmax2(t, PQ[t], slow)
        return L
    AMAX = hex(f2u(2.0**60))
    blk = list(lastk)
    for t in range(4):
        blk += conv(t, 1, K1[t], K1[t]+2) + conv(t, 3, Q2a[t], K2d[t]) + conv(t, 2, AVQ[t], AVQ[t]+2)
    for t in range(4): blk += conv(t, 0, Q1a[t], Q1a[t]+2)
    blk += setA + sp(f"v_mov_b32 v13, 1\nv_mov_b32 v{ACHK}, 0")
    blk += ["v_mov_b32 v26, v224 ; reads v228 v232 v236 v240 v244 v248 v252 IDX", "buffer_store_dword v26, v25, s[12:15], s69 offen sc1"]
    blk += kside(False)
    blk += [f"v_cmp_le_u32 vcc, {AMAX}, v{ACHK}", "!s_cbranch_vccnz L_A_slow ; reads vcc v9 v[12:13] v[32:95]"] + signal(9, C_SCR)
    af = opt.get("af", 2)
    aflag = [f"!s_waitcnt vmcnt({3 if opt.get('na1') else 0}) ; reads v8"] + ([f"v_mov_b32 v8, {LFLAG}", f"ds_add_rtn_u32 v11, v8, v13 offset:{C_KV} ; EX1", "v_subrev_u32 v11, 3, v11",
             "v_and_b32 v11, 0x80000000, v11", "v_or_b32 v12, v12, v11"] if af else []) + ["buffer_store_dword v13, v12, s[12:15], 0 offen sc1"]
    blk += aflag
    if opt.get("lateb", 0):
        k = blk.index("!s_waitcnt vmcnt(0)"); blk.insert(k - 3, blk.pop(k))
    blk += qside(False)
    sch = schedule(blk, prio=lambda l, i: 6000 if "buffer_store" in l else (3000 if "ds_add" in l else 0), vm_lat=(1 if opt.get('na1') else opt.get("ackA", 800)), prev=prevl(), verbose=vb, ds_lat=opt.get("dslA", 90), ds_slack=opt.get("dssA", 24), ds_mul=opt.get("dsmA", 10) / 10)
    if prof and sset == 0:
        k = max(i for i, l in enumerate(sch) if "buffer_store_dwordx2" in l)
        sch = sch[:k+1] + st(2) + st(3) + sch[k+1:]
    if prof and sset == 7:
        tm = dict(schedule.times); pos = [80*k for k in range(1, 8)]
        print("model t at", [(p, max(t for i, t in tm.items() if i <= p)) for p in pos], "len", len(sch), "store at", max(i for i, l in enumerate(sch) if "buffer_store_dwordx2" in l))
        for k, p in reversed(list(enumerate(pos))): sch[p:p] = st(k + 2, 7)
    k = [i for i, l in enumerate(sch) if "IDX" in l][0]
    sch[k:k+1] = ["s_set_gpr_idx_on s27, gpr_idx(SRC0)", sch[k].replace(" IDX", ""), "s_set_gpr_idx_off"]
    emit(sch)
    A(f"v_cmp_le_u32 vcc, {AMAX}, v{ACHK}\ns_nop 0\ns_cbranch_vccnz L_A_slowq")
    A.label("L_A_pre")
    stamp(4)
    A(f"""
    v_mov_b32 v16, v30
    v_mov_b32 v17, v31
    v_mov_b32 v158, 0
    v_mov_b32 v159, 0
    v_mov_b32 v254, 0
    v_mov_b32 v255, 0
    v_and_b32 v8, 31, v0
    v_lshrrev_b32 v10, 5, v0
    v_mul_u32_u24 v10, 960, v10
    {'v_mov_b32 v11, v28' if opt.get("gm", 0) else 'v_min_u32 v11, 23, v8'}
    {'' if opt.get("gm", 0) else 'v_lshl_add_u32 v11, v11, 4, v10'}
    v_lshl_add_u32 v9, v8, 4, v10
    v_cmp_ge_u32 vcc, 20, v8
    v_add_u32 v10, 48, v9
    v_lshrrev_b32 v8, 1, v8
    v_cndmask_b32 v9, v10, v9, vcc
    v_add_u32 v8, 21, v8
    v_and_b32 v10, 32, v0
    v_add_lshl_u32 v8, v8, v10, 2
    v_and_b32 v10, 1, v0
    v_cmp_eq_u32 s[70:71], 1, v10
    s_mov_b32 s67, s66
    s_add_u32 s69, s66, {16*KVP_SZ}
    s_and_b32 s28, s22, {opt.get('grot', 7)}
    s_mul_i32 s28, s28, {2*KVP_SZ}
    s_add_u32 s66, s66, s28
    """)
    for n in range(8):
        A(f"v_cmp_eq_u32 vcc, {n}, v17\ns_nop 1\nv_cndmask_b32 v{24+n}, 0, v16, vcc")
    A("v_lshlrev_b32 v33, 7, v0")
    if af == 2:
        A(f"v_mov_b32 v34, {LFLAG}\ns_cmp_lg_u32 s25, 0\ns_cbranch_scc1 L_a_np")
        poll("A", 33, "s[12:15], s68", 32, 16)
        A(f"v_mov_b32 v32, 4\nds_write_b32 v34, v32 offset:{C_KVP}\ns_branch L_lgap")
        A.label("L_a_np")
        lwait("ap", C_KVP, 4, opt.get("gsl", 1), 34)
    else: poll("A", 33, "s[12:15], s68", 32, 16)
    stamp(5); stamp(1, 3)
    PB = [32 + 8*n for n in range(12)] + [160 + 8*n for n in range(4)]; SUM = 224
    blk = []
    for n in range(16):
        blk += [f"buffer_load_dwordx4 {v(PB[n],4)}, v9, s[12:15], s66 offen offset:{(n&1)*KVP_SZ} sc1",
                f"buffer_load_dwordx4 {v(PB[n]+4,4)}, v11, s[12:15], s66 offen offset:{(n&1)*KVP_SZ+576} sc1"]
        if n & 1: blk += [f"s_add_u32 s66, s66, {2*KVP_SZ}", "s_cmp_eq_u32 s66, s69", "s_cselect_b32 s66, s67, s66"]
    GL = opt.get("glook", 6)
    ld = [blk[i:i+7] for i in range(0, 56, 7)]
    blk = []
    for p_ in range(GL // 2): blk += ld[p_]
    for n in range(16):
        blk.append(f"{MF32} {v(SUM,16)}, v[24:27], {v(PB[n],4)}, {0 if n==0 else v(SUM,16)}")
        blk.append(f"{MF32} {v(SUM,16)}, v[28:31], {v(PB[n]+4,4)}, {v(SUM,16)}")
        if n & 1 and (n + GL) // 2 < 8:
            blk += ld[(n + GL) // 2]
            if (n + GL) // 2 == 7: blk += signal(12, C_HINT)
        if n in (0, 4, 8, 13, 15): blk += st(3 + (0, 4, 8, 13, 15).index(n), 3)
    for n in range(8): blk.append(f"v_cvt_pk_bf16_f32 v{16+n}, v{SUM+2*n}, v{SUM+2*n+1}")
    if prof and sset == 3: blk.append("!s_waitcnt lgkmcnt(0)")
    blk += sp("""
    ds_bpermute_b32 v24, v8, v16
    ds_bpermute_b32 v25, v8, v17
    ds_bpermute_b32 v28, v8, v18
    ds_bpermute_b32 v29, v8, v19
    v_mov_b32 v26, 0
    v_mov_b32 v27, 0
    """)
    OA = [160 + 16*t for t in range(4)]
    for t in range(2):
        for c in range(2):
            blk.append(f"{MF32} {v(OA[t],16)}, {v(16+4*c,4)}, {v(PQ[t]+4*c,4)}, {0 if c==0 else v(OA[t],16)}")
    blk += ["v_cndmask_b32 v24, v24, v28, s[70:71]", "v_cndmask_b32 v25, v25, v29, s[70:71]"]
    emit(schedule(blk, inorder=True, prev=prevl(), verbose=vb))
    stamp(6); stamp(8, 3)
    blk = []
    for t in range(4):
        for c in range(0 if t >= 2 else 2, 3):
            blk.append(f"{MF32} {v(OA[t],16)}, {v(16+4*c,4)}, {v(PQ[t]+4*c,4)}, {0 if c==0 else v(OA[t],16)}")
    for t in range(4):
        blk += [f"v_add_f32 v{OA[t]+12}, {fx(1e-6)}, v{OA[t]+8}", f"v_add_f32 v{OA[t]+14}, {fx(1e-6)}, v{OA[t]+8}",
                f"v_permlane32_swap_b32 v{OA[t]+14}, v{OA[t]+12}"]
        blk += o_fin(OA, OA[t] + 12, 32, 48, t, pk=(t >= 2))
    emit(schedule(blk, vm_gap=60, prev=prevl(), verbose=vb))

    def lpost_l(off, reg=3): return ["s_mov_b64 exec, 1", f"ds_add_u32 v2, v{reg} offset:{off}", "s_mov_b64 exec, -1"]
    def lpost(off, reg=3): emit(lpost_l(off, reg))
    def oaddr_s(br):
        L = sp(f"""
        s_and_b32 s73, s25, 3                   ; tq
        s_mul_i32 s74, s56, {64*2560}
        s_add_u32 s74, s74, {OB + br*32*2560}
        s_lshl_b32 s28, s73, 7
        s_add_u32 s74, s74, s28
        s_mul_i32 s30, s73, 6144
        """)
        for G in range(4):
            L += sp(f"s_add_u32 s28, s35, {G}\ns_and_b32 s28, s28, 3\ns_mul_i32 s28, s28, {8*2560}\ns_add_u32 s{64+G}, s28, s74")
        L += sp(f"s_lshr_b32 s28, s56, 1\ns_lshl_b32 s28, s28, 11\ns_add_u32 s74, s28, {F2 + br*1024}")
        L.append("v_lshl_add_u32 v12, v0, 4, s30")
        return L
    def wreads(n, dst):
        if rp: return [f"ds_read_b128 {v(dst+4*ct,4)}, v8 offset:{(n % 10)*5120 + 1024*ct}" for ct in range(5)]
        s5 = n % 5; goff = HG * ((n // 5) & 1); L = []
        for ct in range(5):
            for jj in range(2):
                if s5 < 4: L.append(f"ds_read_b64_tr_b16 {v(dst+4*ct+2*jj,2)}, v8 offset:{goff + (40*s5+8*jj)*160 + 32*ct}")
                else: L.append(f"ds_read_b64_tr_b16 {v(dst+4*ct+2*jj,2)}, v9 offset:{goff + 80*jj*160 + 32*ct}")
        return L
    def p3main(NP, NR, per, bump, extra, hookf, wstart=1):
        OF = 16; PACC = OF + 4*NR; WF = PACC + 20
        assert WF + 20*NP <= 256
        def oload(n):
            G, s5 = divmod(n, 5); o = OF + 4*(n % NR)
            if s5 < 4:
                return [f"buffer_load_dwordx4 {v(o,4)}, v10, s[12:15], s{64+G} offen sc1",
                        f"s_add_u32 s{64+G}, s{64+G}, 5120" if s5 < 3 else f"s_sub_u32 s{64+G}, s{64+G}, {3*5120}"]
            return [f"buffer_load_dwordx4 {v(o,4)}, v11, s[12:15], s{64+G} offen offset:2048 sc1"]
        LOOK = NR - 1
        blk = []
        for n in range(LOOK): blk += oload(n)
        blk += extra
        RW = []
        for m in range(NP, 20):
            if m == 10 and bump: RW += [f"v_add_u32 v8, {2*HG}, v8"] + ([] if rp else [f"v_add_u32 v9, {2*HG}, v9"])
            RW += [(m, l) for l in wreads(m, WF + 20*(m % NP))]
        for n in range(20):
            o = OF + 4*(n % NR)
            if n % 5 == 4:
                blk += sp(f"""
                v_mov_b32 v6, v{o+2}
                v_mov_b32 v7, v{o+3}
                v_mov_b32_dpp v{o+2}, v{o} row_ror:8 row_mask:0xf bank_mask:0x3
                v_mov_b32_dpp v{o+3}, v{o+1} row_ror:8 row_mask:0xf bank_mask:0x3
                v_mov_b32_dpp v{o}, v6 row_ror:8 row_mask:0xf bank_mask:0xc
                v_mov_b32_dpp v{o+1}, v7 row_ror:8 row_mask:0xf bank_mask:0xc
                """)
            buf = WF + 20*(n % NP)
            R = []
            while RW and n >= wstart and len(R) < per and (isinstance(RW[0], str) or RW[0][0] - NP < n):
                x = RW.pop(0); R.append(x if isinstance(x, str) else x[1])
            assert not RW or isinstance(RW[0], str) or RW[0][0] > n + 1
            for ct in range(5):
                blk.append(f"{MF16} {v(PACC+4*ct,4)}, {v(buf+4*ct,4)}, {v(o,4)}, {0 if n==0 else v(PACC+4*ct,4)}")
                if ct == 0 and n + LOOK < 20: blk += oload(n + LOOK)
                k = (len(R) + (4 - ct)) // (5 - ct)
                blk += R[:k]; R = R[k:]
            blk += hookf(n, not RW)
        return blk, PACC, WF
    def p3main2(per, bump, extra, hookf, wstart=1):
        OF = 16; PACC = 36; WF = 56
        def ob(n): return OF + 4*(n % 10) if n % 10 < 5 else WF + 4*(n % 10 - 5)
        def wb_(m): return WF + 20*m if m < 10 else WF + 20*(1 + (m - 10) % 9)
        def wfree(m): return m - 9 if m < 19 else 10
        def oload(n):
            G, s5 = divmod(n, 5); o = ob(n)
            if s5 < 4:
                return [f"buffer_load_dwordx4 {v(o,4)}, v10, s[12:15], s{64+G} offen sc1",
                        f"s_add_u32 s{64+G}, s{64+G}, 5120" if s5 < 3 else f"s_sub_u32 s{64+G}, s{64+G}, {3*5120}"]
            return [f"buffer_load_dwordx4 {v(o,4)}, v11, s[12:15], s{64+G} offen offset:2048 sc1"]
        blk = []
        for n in range(5): blk += oload(n)
        nxt = 5
        blk += extra + ([f"v_add_u32 v8, {bump & 0xffffffff}, v8", f"v_add_u32 v9, {bump & 0xffffffff}, v9"] if bump else [])
        RW = [(m, l) for m in range(10, 20) for l in wreads(m, wb_(m))]
        LK = opt.get("look", 9)
        for n in range(20):
            o = ob(n)
            if n % 5 == 4:
                blk += sp(f"""
                v_mov_b32 v6, v{o+2}
                v_mov_b32 v7, v{o+3}
                v_mov_b32_dpp v{o+2}, v{o} row_ror:8 row_mask:0xf bank_mask:0x3
                v_mov_b32_dpp v{o+3}, v{o+1} row_ror:8 row_mask:0xf bank_mask:0x3
                v_mov_b32_dpp v{o}, v6 row_ror:8 row_mask:0xf bank_mask:0xc
                v_mov_b32_dpp v{o+1}, v7 row_ror:8 row_mask:0xf bank_mask:0xc
                """)
            R = []
            while RW and len(R) < per and wfree(RW[0][0]) < n and n >= wstart: R.append(RW.pop(0)[1])
            assert not RW or RW[0][0] > n + 1
            for ct in range(5):
                blk.append(f"{MF16} {v(PACC+4*ct,4)}, {v(wb_(n)+4*ct,4)}, {v(o,4)}, {0 if n==0 else v(PACC+4*ct,4)}")
                if nxt < 20 and nxt <= n + LK and (nxt - 5 <= ct if n == 0 else ct in (0, 2)) and (nxt < 10 or nxt - 10 < n):
                    blk += oload(nxt); nxt += 1
                k = (len(R) + (4 - ct)) // (5 - ct)
                blk += R[:k]; R = R[k:]
            blk += hookf(n, not RW)
        assert nxt == 20
        return blk, PACC, WF
    def dump(base):
        A("s_waitcnt vmcnt(0)\ns_memtime s[76:77]\ns_memrealtime s[100:101]\ns_waitcnt lgkmcnt(0)")
        for k in range(1, 9): A(f"s_sub_u32 s{80+2*k}, s{80+2*k}, s80\nv_mov_b32 v{16+k}, s{80+2*k}")
        A(f"""
        s_sub_u32 s76, s76, s80
        v_mov_b32 v16, s76
        v_mov_b32 v25, s98
        v_mov_b32 v26, s100
        v_mov_b32 v27, 0
        s_lshl_b32 s28, s2, 2
        s_and_b32 s29, s25, 3
        s_add_u32 s28, s28, s29
        s_lshl_b32 s28, s28, 6
        s_add_u32 s28, s28, {base}
        v_mov_b32 v2, 0
        buffer_store_dwordx4 v[16:19], v2, s[12:15], s28 offen
        buffer_store_dwordx4 v[20:23], v2, s[12:15], s28 offen offset:16
        buffer_store_dwordx4 v[24:27], v2, s[12:15], s28 offen offset:32
        """)
    rotc = {4: "s_add_u32 s35, s57, s56", 2: "s_lshl_b32 s35, s57, 1", 1: "s_mov_b32 s35, 0"}[opt.get("p3r", 2)]
    def otouch(br, bit):
        if not opt.get("ot", 0) >> bit & 1: return None
        A(f"""
        v_mul_u32_u24 v18, 2560, v0
        s_mul_i32 s33, s56, {64*2560}
        s_and_b32 s28, s57, 3
        s_mul_i32 s28, s28, 640
        s_add_u32 s33, s33, s28
        s_add_u32 s33, s33, {OB + br*32*2560}
        """)
        return [f"buffer_load_dword v19, v18, s[12:15], s33 offen offset:{128*k} sc1" for k in range(5)]
    wf = opt.get("wf", 1)
    NF = 8; assert wf and af
    def oflag(tag):
        if wf:
            A(f"""
            s_mov_b64 exec, 1
            ds_add_rtn_u32 v6, v2, v13 offset:{C_GATE}
            s_mov_b64 exec, -1
            s_waitcnt lgkmcnt(0)
            v_readfirstlane_b32 s28, v6
            s_cmp_lg_u32 s28, 3
            s_cbranch_scc1 L_of{tag}
            """)
        A("buffer_store_dword v13, v14, s[12:15], 0 offen sc1")
        A.label(f"L_of{tag}")
    A.label("L_P3c")
    if opt.get("na2"):
        A(f"v_mov_b32 v2, {LFLAG}\nv_bfrev_b32 v14, 1\nv_writelane_b32 v14, s78, 0")
        oflag("z")
        oflag = lambda tag: None
    NPc = opt.get("npc", 9); NRc = (256 - 16 - 20 - 20*NPc) // 4
    A(f"""
    v_mov_b32 v2, {LFLAG}
    ds_read_b32 v4, v2 offset:{C_B01}
    v_bfrev_b32 v14, 1
    v_writelane_b32 v14, s78, 0
    {rotc}
    """)
    emit(waddr(RB))
    A(f"""
    s_waitcnt lgkmcnt(0)
    v_readfirstlane_b32 s79, v4
    s_cmp_ge_u32 s79, 4
    s_cbranch_scc1 L_lgp
    """)
    A("s_waitcnt vmcnt(0)"); oflag("a")
    lwait("p", C_B01)
    A("s_waitcnt vmcnt(6)")
    WFc = 16 + 4*NRc + 20
    nearly = opt.get("nearly", 6)
    for n in range(nearly): emit(wreads(n, WFc + 20*n))
    fp_ = opt.get("fp", 1)
    if fp_: emit(oaddr_v() + oaddr_s(1 - sw))
    A(f"""
    s_waitcnt vmcnt(0)
    s_cmp_lt_u32 s79, 4
    s_cbranch_scc1 L_P3_nf
    """)
    oflag("b")
    A.label("L_P3_nf")
    stamp(7)
    if fp_ == 2:
        A(f"s_cmp_lg_u32 s25, 0\ns_cbranch_scc1 L_c_n0\ns_mov_b64 exec, 0xff\nbuffer_load_dword v16, v5, s[12:15], s74 offen sc1\ns_mov_b64 exec, -1\nL_c_n0:")
    for n in range(nearly, NPc): emit(wreads(n, WFc + 20*n))
    if not fp_: emit(oaddr_v() + oaddr_s(1 - sw))
    cp = opt.get("cp", 0)
    if not cp: lwait("q", C_B23)
    FIN = RA + HG + 0
    n0 = len(A.lines)
    A(f"""
    s_lshl_b32 s28, s56, 6
    s_mul_i32 s30, s73, 3072
    s_add_u32 s30, s30, {FIN}
    v_and_b32 v2, 15, v0
    v_mul_u32_u24 v2, 160, v2
    v_lshrrev_b32 v3, 4, v0
    v_lshlrev_b32 v3, 3, v3
    v_add3_u32 v2, v2, v3, s30
    v_add_u32 v3, s30, v1
    s_lshl_b32 s29, s73, 3
    s_add_u32 s28, s28, s29
    s_mul_i32 s28, s28, 1280
    s_mul_i32 s29, s57, 160
    s_add_u32 s72, s28, s29
    """)
    for rd, dst in enumerate((1, 4, 15)):
        A(f"""
        v_add_u32 v6, {64*rd}, v0
        v_mul_u32_u24 v7, 205, v6
        v_lshrrev_b32 v7, 11, v7                ; row = j/10
        v_lshlrev_b32 v6, 4, v6
        v_mul_u32_u24 v{dst}, {1280-160}, v7
        v_lshrrev_b32 v7, 3, v7
        v_mul_u32_u24 v7, {24*1280}, v7
        v_add3_u32 v{dst}, v{dst}, v6, v7
        """)
    A(f"""
    v_bfrev_b32 v6, 1
    v_cndmask_b32 v15, v6, v15, s[60:61]
    s_mov_b32 s16, s50
    s_mov_b32 s17, s51
    s_mov_b32 s18, 2621440
    """)
    finaddr = []
    if fp_:
        finaddr = [l for l in A.lines[n0:] if not l.startswith(";")]; del A.lines[n0:]
    if cp:
        A(f"""
        v_mov_b32 v7, {LFLAG}
        s_cmp_gt_u32 s25, 1
        s_cbranch_scc1 L_c_np
        s_lshl_b32 s28, s25, 10
        s_xor_b32 s74, s74, s28
        s_lshl_b32 s28, s25, 2
        v_subrev_u32 v17, s28, v7
        """)
        poll("P", 5, "s[12:15], s74", 16, NF)
        A(f"v_mov_b32 v16, 4\nds_write_b32 v17, v16 offset:{C_POLC}")
        A.label("L_c_np")
        lwait("q", C_B23, 4, 1, 7)
        lwait("cp", C_POLC, 4, opt.get("gsl", 1), 7)
    else:
        A(f"v_mov_b32 v7, {LFLAG}\ns_cmp_lg_u32 s25, 0\ns_cbranch_scc1 L_c_np")
        if fp_ == 2: A("s_waitcnt vmcnt(0)\nv_cmp_eq_u32 vcc, 0, v16\ns_nop 0\ns_and_b32 s28, vcc_lo, 0xff\ns_cbranch_scc0 L_goP")
        poll("P", 5, "s[12:15], s74", 16, NF)
        A(f"v_mov_b32 v16, 4\nds_write_b32 v7, v16 offset:{C_POLC}\ns_branch L_lgcp")
        A.label("L_c_np")
        lwait("cp", C_POLC, 4, opt.get("gsl", 1), 7)
    stamp(8); stamp(1, 1)
    A(f"s_setprio {opt.get('cprio', 0)}")
    XA = 16; nbar = opt.get("nbar", 17)
    def chook(n, done):
        L = st(3, 1) if n == 0 else (st(4, 1) if n == 10 else [])
        if n == nbar:
            L += st(5, 1) + ["s_barrier"] + st(6, 1)
            if prof and sset == 1: L.append("!s_waitcnt lgkmcnt(0)")
            L += ["ds_read_b32 v8, v12 offset:5120"] + [f"ds_read_b128 {v(XA+4*ct,4)}, v12 offset:{1024*ct}" for ct in range(5)]
        return L
    blk, PACC, WF = p3main(NPc, NRc, opt.get("rper", 8), True, finaddr, chook)
    for ct in range(5):
        for n in range(2): blk.append(f"v_pk_fma_f32 {v(XA+4*ct+2*n,2)}, {v(PACC+4*ct+2*n,2)}, v[8:9], {v(XA+4*ct+2*n,2)} op_sel_hi:[1,0,1] ; junk v9")
        for n in range(2): blk.append(f"v_cvt_pk_bf16_f32 v{100+2*ct+n}, v{XA+4*ct+2*n}, v{XA+4*ct+2*n+1}")
        blk.append(f"ds_write_b64 v2, {v(100+2*ct,2)} offset:{32*ct}")
    blk += [f"ds_read_b128 {v(112+4*rd,4)}, v3 offset:{1024*rd}" for rd in range(3)]
    blk += [f"buffer_store_dwordx4 {v(112+4*rd,4)}, v{dst}, s[16:19], s72 offen nt" for rd, dst in enumerate((1, 4, 15))]
    emit(schedule(blk, inorder=True, prev=prevl(), verbose=vb))
    stamp(7, 1); stamp(8, 1)
    if prof: dump(DBG)
    A("s_endpgm")
    A.label("L_h_post")
    A(f"""
    v_lshlrev_b32 v29, 4, v0
    v_add_u32 v29, {SCR + 3072}, v29
    ds_read_b128 v[4:7], v29
    ds_read_b128 v[8:11], v29 offset:1024
    """)
    emit(p3ids)
    A(f"""
    s_cmp_lt_u32 s35, 2
    s_cselect_b32 s16, s42, s46
    s_cselect_b32 s17, s43, s47
    s_mov_b32 s18, 819200
    s_lshl_b32 s28, s21, 1
    s_and_b32 s29, s35, 1
    s_add_u32 s28, s28, s29
    """)
    if p3m == 2: A("s_mul_i32 s28, s28, 12800\ns_and_b32 s29, s20, 1\ns_mul_i32 s29, s29, 640\ns_add_u32 s28, s28, s29")
    else: A("s_mul_i32 s28, s28, 6400\ns_add_u32 s69, s28, 409600\ns_mov_b32 s4, s16\ns_mov_b32 s5, s17\ns_mov_b32 s6, s18")
    A(f"""
    s_mov_b32 s72, s52
    s_mov_b32 s73, s53
    s_movk_i32 s74, 256
    v_min_u32 v14, {NINIT-1}, v0
    v_mul_u32_u24 v14, {opt.get("dst", 12)}, v14
    buffer_load_dword v15, v14, s[72:75], 0 offen sc1
    s_waitcnt lgkmcnt(0)
    buffer_load_dword v13, v6, s[16:19], s28 offen
    """)
    A("v_mov_b32 v1, v7")
    if p3m == 1: A("v_mov_b32 v30, v6")
    wt = 2
    A(f"s_setprio 0\ns_waitcnt vmcnt({4+wt})\ns_barrier")
    A(f"""
    s_waitcnt vmcnt({wt})
    s_barrier                               ; b9b
    s_mul_i32 s62, s35, 6400
    """)
    if rp:
        A(f"s_mul_i32 s63, s57, {8*HG}\ns_add_u32 s63, s63, s62\ns_add_u32 s63, s63, {W3F}")
    else:
        A(f"""
        s_mov_b32 s16, s42                      ; s[16:19] = WoA
        s_mov_b32 s17, s43
        s_mov_b32 s18, 819200
        s_mov_b32 s8, s46                       ; s[8:11] = WoB
        s_mov_b32 s9, s47
        s_mov_b32 s10, 819200
        s_mul_i32 s28, s57, 160
        s_mul_i32 s63, s35, {40*1280}
        s_add_u32 s63, s63, s28
        s_mov_b32 s61, 0x0003ffff               ; 50 lanes
        """)
    A(f"""
    {rotc}
    v_mov_b32 v2, {LFLAG}
    v_mov_b32 v3, 1
    s_waitcnt vmcnt(1)
    v_cmp_eq_u32 vcc, 0, v15
    s_nop 0
    s_cbranch_vccz L_goI
    """)
    poll("I", 14, "s[72:75], 0", 15, 64)
    A("s_barrier")
    stamp(1)
    thr = opt.get("thr", 6)
    wa = opt.get("w3a", 5); wb = opt.get("w3b", 0)
    wa0 = opt.get("w3a0", 5)
    NI = 8
    WFh = 56
    hp = opt.get("lwp", 1)
    def wo(k, br, G, dst, role, hooks=None):
        nh = (wa, wb)[role]
        th = (opt.get("thrA", 3), opt.get("thrB", 2))[role] if k < nh else thr
        tg = f"{k}{'ab'[role]}"
        if k == nh: lwait(f"h{tg}", C_HINT, 4, opt.get("hsl", 4), hp=hp)
        A(f"""
        s_add_u32 s28, s35, {G}
        s_and_b32 s28, s28, 3
        s_mul_i32 s75, s28, {160*1280}
        s_add_u32 s75, s75, s63
        s_add_u32 m0, s62, {dst}
        s_mov_b64 exec, s[60:61]
        """)
        stamp(k + 1, 6)
        for n in range(NI):
            if n == 4: A("s_add_u32 m0, m0, 3200")
            if n: A(f"s_add_u32 s75, s75, {5600 if n != 4 else 5600 + 3200}")
            A(f"buffer_load_dwordx4 v4, {'s[8:11]' if br ^ sw else 's[16:19]'}, s75 offen offset:{(n&3)*800} lds")
            if hooks and (8*k + n) in hooks:
                A("s_mov_b64 exec, -1")
                for h in hooks[8*k + n]: h()
                A("s_mov_b64 exec, s[60:61]")
            if role == 1 and k < nh and opt.get("adp", 0):
                A(f"""
                s_cbranch_vccnz L_ad{tg}{n}
                ds_read_b32 v6, v2 offset:{C_HINT}
                s_waitcnt vmcnt({th-1}) lgkmcnt(0)
                s_setprio 3
                v_cmp_le_u32 vcc, 4, v6
                s_setprio 0
                L_ad{tg}{n}:
                s_waitcnt vmcnt({thr-1})
                """)
            elif th: A(f"s_waitcnt vmcnt({th-1})")
        A("s_mov_b64 exec, -1")
    emit(oaddr_s(sw))
    A("s_mov_b64 vcc, 0")
    A("s_cmp_eq_u32 s23, 0\ns_cbranch_scc1 L_h_sA")
    for role in (1, 0):
        r_ = "ab"[role]
        if role == 0: A.label("L_h_sA")
        pre = sum([wreads(n, WFh + 20*n) for n in range(10)], [])
        il = opt.get("il" + r_, role)
        H = {}
        def at(i, f): H.setdefault(i, []).append(f)
        def landed(last, cnt):
            at(last + 6, lambda: (A("s_waitcnt vmcnt(6)"), lpost(cnt)))
        landed(15, C_A01); landed(47, C_B23)
        eh = opt.get("eh", 0); ep = opt.get("ep", 59)
        if eh & 1: at(ep, lambda: A(f"s_cmp_lg_u32 s25, 4\ns_cbranch_scc1 L_ep{r_}\ns_mov_b64 exec, 0xff\nbuffer_load_dword v16, v5, s[12:15], s74 offen sc1\nL_ep{r_}:"))
        if il:
            landed(31, C_B01)
            c0 = opt.get("ilc", 26)
            at(c0, lambda: (lwait("c0" + r_, C_SCR, hp=hp), lwait("c1" + r_, C_A01, hp=hp)))
            nf = -(-100 // (43 - c0))
            for i in range(c0, 43): at(i, lambda: emit([pre.pop(0) for _ in range(min(nf, len(pre)))]))
            at(43, lambda: (A("s_waitcnt lgkmcnt(0)"), lpost(C_PRE)))
        wo(0, 0, 0, RA, role, H); wo(1, 0, 1, RA + HG, role, H); wo(2, 1, 0, RB, role, H); wo(3, 1, 1, RB + HG, role, H)
        if not il:
            lwait("c0" + r_, C_SCR, hp=hp); lwait("c1" + r_, C_A01, hp=hp)
            emit(pre); A("s_waitcnt vmcnt(0) lgkmcnt(0)"); lpost(C_PRE); lpost(C_B01)
        stamp(2)
        wo(4, 1, 2, RB + 2*HG, role, H); wo(5, 1, 3, RB + 3*HG, role, H)
        stamp(3)
        lwait("c2" + r_, C_PRE, hp=hp)
        wo(6, 0, 2, RA, role, H); wo(7, 0, 3, RA + HG, role, H)
        if role == 1: A("s_branch L_h_sJ")
    A.label("L_h_sJ")
    if not eh & 2: A("s_waitcnt vmcnt(0)"); lpost(C_A23)
    stamp(4)
    A("s_cmp_lg_u32 s25, 4\ns_cbranch_scc1 L_h_np")
    if eh & 1: A(f"s_waitcnt vmcnt({63-ep})\nv_cmp_eq_u32 vcc, 0, v16\ns_nop 0\ns_and_b32 s28, vcc_lo, 0xff\ns_cbranch_scc0 L_goH")
    poll("H", 5, "s[12:15], s74", 16, NF)
    A("v_mov_b32 v14, 4"); lpost(C_POLL, 14)
    if eh & 2: A("s_branch L_lgc5")
    A.label("L_h_np")
    if not eh & 2: lwait("c3", C_A23)
    lwait("c5", C_POLL, 4, opt.get("gsl", 1) and True)
    stamp(5)
    A(f"s_setprio {opt.get('hprio3', 1)}")
    ws_ = opt.get("wst", 4) if eh & 2 else 1
    def hhook(n, done):
        if eh & 2:
            if n == 0: return lpost_l(C_A23)
            if n == ws_ - 2: return [f"ds_read_b32 v13, v2 offset:{C_A23}"]
            if n == ws_ - 1: return ["v_readfirstlane_b32 s28, v13", "s_cmp_lt_u32 s28, 4", "s_cbranch_scc1 L_h_w3", "L_h_w3b:"]
        if n == 8: return [f"v_mul_f32 v14, {fx(LOG2E if sw else -LOG2E)}, v14", "v_exp_f32 v14, v14"]
        if n == 9: return ["v_add_f32 v14, 1.0, v14", "v_rcp_f32 v14, v14"]
        if n == 10: return ["v_sub_f32 v15, 1.0, v14"]
        if n == 14: return lpost_l(C_XCH)
        if n == 17: return [f"ds_read_b32 v13, v2 offset:{C_XCH}"]
        return []
    gl = sp(f"""
        s_lshl_b32 s28, s56, 8
        s_lshl_b32 s29, s73, 5
        s_add_u32 s28, s28, s29
        s_add_u32 s28, s28, {GATE}
        buffer_load_dword v14, v1, s[12:15], s28 offen sc1
        """)
    if opt.get("look", 0): blk, PACC, WF = p3main2(opt.get("rperh", 8), 0, gl, hhook)
    else: blk, PACC, WF = p3main(10, 5, opt.get("rperh", 8), False, gl, hhook, ws_)
    assert WF == WFh
    blk += ["v_readfirstlane_b32 s28, v13", "s_cmp_ge_u32 s28, 4", "s_cbranch_scc1 L_lgc4"]
    emit(schedule(blk, inorder=True, prev=prevl(), verbose=vb))
    lwait("c4", C_XCH, 4, False)
    stamp(6)
    A("ds_write_b32 v12, v15 offset:5120\ns_nop 3")
    for ct in range(5):
        for n in range(2): A(f"v_pk_mul_f32 {v(PACC+4*ct+2*n,2)}, {v(PACC+4*ct+2*n,2)}, v[14:15] op_sel_hi:[1,0]")
        A(f"ds_write_b128 v12, {v(PACC+4*ct,4)} offset:{1024*ct}")
    A("s_waitcnt lgkmcnt(0)")
    stamp(7)
    A("s_barrier")
    stamp(8)
    if prof: dump(DBG + 0x10000)
    A("s_endpgm")
    if eh & 2:
        A.label("L_h_w3")
        lwait("c3", C_A23, 4, False)
        A("s_branch L_h_w3b")
    A.label("L_A_slow")
    A("s_waitcnt vmcnt(0) lgkmcnt(0)\ns_nop 15")
    emit(schedule(kside(True) + signal(9, C_SCR) + aflag, inorder=True))
    A.label("L_A_slowq")
    A("s_nop 15")
    emit(schedule(qside(True), inorder=True))
    A("s_branch L_A_pre")
    A.label("L_B_slow")
    CM = 16; CT = 136; SK1 = 32; SK2 = 38; SV = 44; MX = 8
    A(f"""
    s_waitcnt vmcnt(0)
    s_mov_b32 s79, 9
    v_and_b32 v8, 31, v0
    v_lshrrev_b32 v9, 5, v0
    v_lshlrev_b32 v9, 2, v9
    v_sub_u32 v8, v8, v9                    ; i - 4h
    v_mov_b32 v9, 0xff800000
    v_mov_b32 v36, 0
    v_mov_b32 v37, 0
    v_mov_b32 v40, 0
    v_mov_b32 v41, 0
    s_lshl_b32 s28, s58, 4
    s_mul_i32 s66, s28, {KVB_SZ}
    s_add_u32 s66, s66, {KVB}
    """)
    for vv in range(16):
        kk = 8 * (vv >> 2) + (vv & 3)
        A(f"v_cmp_gt_i32 vcc, {kk}, v8\ns_nop 1\nv_cndmask_b32 v{CM+vv}, 0, v9, vcc")
    for t in range(4):
        A(f"""
        s_lshl_b32 s67, s22, 2
        s_add_u32 s67, s67, {t}
        s_sub_u32 s68, s67, 8
        s_mov_b32 s69, 0                        ; pass
        v_mov_b32 v{MX}, 0xff800000
        """)
        for r in range(16): A(f"v_mov_b32 v{O[t]+r}, 0")
        A.label(f"L_sp{t}")
        A("s_max_i32 s70, s68, 0")
        A.label(f"L_sk{t}")
        A(f"""
        s_lshr_b32 s28, s70, 2
        s_mul_i32 s28, s28, {KVB_SZ}
        s_add_u32 s28, s28, s66
        s_and_b32 s29, s70, 3
        s_lshl_b32 s30, s29, 10
        s_add_u32 s30, s30, s28
        buffer_load_dwordx4 {v(SK1,4)}, v1, s[12:15], s30 offen sc1
        s_lshr_b32 s30, s29, 1
        s_lshl_b32 s30, s30, 9
        s_and_b32 s31, s29, 1
        s_lshl_b32 s31, s31, 3
        s_add_u32 s30, s30, s31
        s_add_u32 s30, s30, s28
        s_add_u32 s30, s30, 4096
        buffer_load_dwordx2 {v(SK2,2)}, v11, s[12:15], s30 offen sc1
        s_mul_i32 s30, s29, 1536
        s_add_u32 s30, s30, s28
        s_add_u32 s30, s30, 5120
        buffer_load_dwordx4 {v(SV,4)}, v6, s[12:15], s30 offen sc1
        buffer_load_dwordx4 {v(SV+4,4)}, v6, s[12:15], s30 offen offset:768 sc1
        s_cmp_eq_u32 s70, s68
        s_cselect_b32 s28, 0xff800000, 0
        s_cselect_b32 s29, -1, 0
        s_cmp_eq_u32 s70, s67
        s_cselect_b32 s29, -1, s29
        """)
        for r in range(16): A(f"v_xor_b32 v{CT+r}, s28, v{CM+r}\nv_and_b32 v{CT+r}, s29, v{CT+r}")
        k2 = SK2 - (2 if t & 1 else 0)
        A(f"""
        s_waitcnt vmcnt(0)
        s_nop 1
        {MF32} {v(S[0],16)}, {v(SK1,4)}, {v(Q1[t],4)}, {v(CT,16)}
        {MF32} {v(S[0],16)}, {v(k2,4)}, {v(Q2op[t],4)}, {v(S[0],16)}
        s_nop 15
        s_cmp_lg_u32 s69, 0
        s_cbranch_scc1 L_s2{t}
        """)
        for r in range(8): A(f"v_max3_f32 v{MX}, v{MX}, v{S[0]+2*r}, v{S[0]+2*r+1}")
        A(f"s_branch L_sn{t}")
        A.label(f"L_s2{t}")
        for r in range(16): A(f"v_sub_f32 v{S[0]+r}, v{S[0]+r}, v{MX}")
        for r in range(16): A(f"v_exp_f32 v{S[0]+r}, v{S[0]+r}")
        for r in range(8): A(f"v_cvt_pk_bf16_f32 v{P+r}, v{S[0]+2*r}, v{S[0]+2*r+1}")
        A(f"""
        s_nop 1
        {MF32} {v(O[t],16)}, {v(SV,4)}, {v(P,4)}, {v(O[t],16)}
        {MF32} {v(O[t],16)}, {v(SV+4,4)}, {v(P+4,4)}, {v(O[t],16)}
        s_nop 15
        """)
        A.label(f"L_sn{t}")
        A(f"""
        s_add_u32 s70, s70, 1
        s_cmp_le_u32 s70, s67
        s_cbranch_scc1 L_sk{t}
        v_mov_b32 v9, v{MX}
        s_nop 1
        v_permlane32_swap_b32 v{MX}, v9
        v_max_f32 v{MX}, v{MX}, v9
        s_add_u32 s69, s69, 1
        s_cmp_lt_u32 s69, 2
        s_cbranch_scc1 L_sp{t}
        """)
    A("s_branch L_B_fin4")
    A.label("L_end")
    return A

DOC = """;
;  P2B sliding-window attention: K / V^T fragments published for the two following blocks, 36 32x32 tiles per wave.
"""
def wrap(A, lds=163840, header=""):
    hdr = header + f"; @launch grid=(256,1,1) block=(512,1,1) lds={lds}\n" + (DOC if header else "")
    return hdr + f""".amdgcn_target "amdgcn-amd-amdhsa--gfx950"
.text
.globl {NAME}
.p2align 8
.type {NAME},@function
{NAME}:
{A.text()}    s_endpgm
.section .rodata,"a"
.p2align 6
.amdhsa_kernel {NAME}
  .amdhsa_next_free_vgpr 256
  .amdhsa_next_free_sgpr 102
  .amdhsa_accum_offset 256
  .amdhsa_group_segment_fixed_size 0
  .amdhsa_kernarg_size 88
  .amdhsa_user_sgpr_count 2
  .amdhsa_user_sgpr_kernarg_segment_ptr 1
  .amdhsa_system_sgpr_workgroup_id_x 1
.end_amdhsa_kernel
"""
if __name__ == "__main__":
    HEADER = open("gated_mix__linear_kernel_hedgehog__sliding_block__prompt.s.ref").read().split("; Override")[0]
    opt = dict(DEFAULTS)
    out = "k16.s"
    for a in sys.argv[1:]:
        if "=" in a:
            k, x = a.split("="); opt[k] = int(x)
        else: out = a
    A = gen(opt)
    for p in check_hazards(A.lines): print("HAZARD", p)
    open(out, "w").write(wrap(A, header=HEADER))
```

```python
import gen16 as G, sys
d = "cdna_kernels/"
for tag, sel in zip("abcdef", [int(x) for x in sys.argv[1:]]):
    A = G.gen(dict(G.DEFAULTS)); L = A.lines
    i = L.index("s_cbranch_scc1 L_end"); L.insert(i+1, "s_memrealtime s[80:81]")
    i = L.index("L_P3c:")
    L[i+1:i+1] = ["v_mov_b32 v6, s80", "v_mov_b32 v7, 0", "s_lshl_b32 s28, s2, 7", f"s_add_u32 s28, s28, {G.DBG}", "s_cmp_lg_u32 s25, 0", "s_cbranch_scc1 L_zz", "buffer_store_dword v6, v7, s[12:15], s28 offen sc1", "s_waitcnt vmcnt(0)", "L_zz:"]
    st = [i for i, l in enumerate(L) if "s[16:19], s72 offen" in l][-1]
    spin = ["s_or_b32 s28, s2, s25", "s_cmp_lg_u32 s28, 0", "s_cbranch_scc1 L_sd",
            "L_s1:", "s_memrealtime s[76:77]", "s_waitcnt lgkmcnt(0)", "s_sub_u32 s29, s76, s80", "s_cmpk_lt_u32 s29, 4000", "s_cbranch_scc1 L_s1",
            "v_mov_b32 v7, 0", f"s_mov_b32 s28, {G.DBG + sel*128}", "buffer_load_dword v6, v7, s[12:15], s28 offen sc1", "s_waitcnt vmcnt(0)", "v_readfirstlane_b32 s28, v6",
            "s_sub_u32 s28, s28, s80", "s_add_u32 s28, s28, 100", "s_min_u32 s28, s28, 1000", "s_mul_i32 s28, s28, 10", "s_add_u32 s28, s28, 6000",
            "L_s2:", "s_memrealtime s[76:77]", "s_waitcnt lgkmcnt(0)", "s_sub_u32 s29, s76, s80", "s_cmp_lt_u32 s29, s28", "s_cbranch_scc1 L_s2", "L_sd:"]
    L[st+1:st+1] = spin
    open(d + f"p_{tag}.s", "w").write(G.wrap(A))
```

```python
import sys, struct, math
from asmlib import *

NAME = "gated_mix__linear_kernel_hedgehog__sliding_block__prompt_kernel"
def f2u(x): return struct.unpack("<I", struct.pack("<f", x))[0]
def fx(x): return hex(f2u(x))
LOG2E = math.log2(math.e)

SLOT = 47104; WOFF = 16384; STG = 3 * SLOT; GWL = STG
HG = 25600
RA = 0; RB = 2 * HG
SCR = 6 * HG - 64; SCRW = 2560
LFLAG = 163776
C_SCR, C_A01, C_PRE, C_XCH, C_B01, C_GATE, C_HINT, C_B23, C_A23, C_POLL, C_POLC, C_KV, C_KVP, C_G7 = 0, 4, 8, 12, 16, 20, 24, 28, 32, 36, 40, 44, 48, 52
F1A = 0x0; F2 = 0x4000; F1B = 0xc000; F3 = 0x1c000
GATE = 0x50000; KVP = 0x58000; KVP_SZ = 1920
KVB = 0x148000; KVB_SZ = 11264; W3F = 0x6c8000; OB = 0x6d0000; DBG = 0x1000000
SPIN = 2000000

def acc(tt, ft): return 128 + ft * 32 + tt * 4
MF32 = "v_mfma_f32_32x32x16_bf16"; MF16 = "v_mfma_f32_16x16x32_bf16"
def sp(txt): return [l.strip() for l in txt.split("\n") if l.strip() and not l.strip().startswith(";")]
DEFAULTS = dict(map=2, iw0=234, w3b=2, thr=4, thrA=2, w3a=6, dm=1, lam=8, nfs=14, gapB=60, f1=3, p1=18, c1=33, f2=22, nearly=4, psleep=5, mvs=1, merge=150, es=3, dl=4)

def gen(opt):
    A = Asm()
    schedule.merge = opt.get("merge", 0)
    prof = opt.get("prof", 0); sset = opt.get("sset", 0); vb = opt.get("verbose", 0)
    def st(k, ss=0): return [f"s_memtime s[{80+2*k}:{81+2*k}]"] if (prof and ss == sset) else []
    def stamp(k, ss=0):
        for l in st(k, ss): A(l)
    def emit(L):
        for l in L:
            if l.endswith("; EX1"): A("s_mov_b64 exec, 1"); A(l[:-5]); A("s_mov_b64 exec, -1")
            else: A(l)
    def prevl(): return [l for l in A.lines[-24:] if not l.endswith(":")]
    apoll = "".join(c for k, c in enumerate("PHAB") if opt.get("ap", 0) >> k & 1)
    def poll(tag, areg, soff, dreg, lanes, wide=False, sleep=None, cmp=None, touch=None):
        if sleep is None: sleep = opt.get("psleep", 2)
        A(f"s_mov_b32 s29, 0\ns_mov_b64 exec, {'s[60:61]' if lanes == 32 else (-1 if lanes == 64 else hex((1 << lanes) - 1))}")
        at = tag[0] in apoll
        if at: A(f"v_mov_b32 v{dreg}, 0")
        A.label(f"L_poll{tag}")
        A(f"""
        {f'buffer_atomic_add v{dreg}, v{areg}, {soff} offen sc0' if at else f'buffer_load_dword v{dreg}, v{areg}, {soff} offen sc1'}
        s_add_u32 s29, s29, 1
        s_cmp_ge_u32 s29, {SPIN}
        s_cbranch_scc1 L_go{tag}
        s_waitcnt vmcnt(0)
        """)
        if wide: A(f"v_min_u32 v{dreg}, v{dreg}, v{dreg+1}\nv_min3_u32 v{dreg}, v{dreg}, v{dreg+2}, v{dreg+3}")
        A(f"""
        {cmp or f'v_cmp_eq_u32 vcc, 0, v{dreg}'}
        s_nop 0
        s_cbranch_vccz L_go{tag}
        """)
        if touch:
            A(f"s_andn2_b64 exec, exec, vcc\ns_cbranch_execz L_nt{tag}")
            emit(touch)
            A.label(f"L_nt{tag}")
        A("s_mov_b64 exec, vcc")
        if sleep: A(f"s_sleep {sleep}")
        A(f"s_branch L_poll{tag}")
        A.label(f"L_go{tag}")
        A("s_mov_b64 exec, -1")
    def lwait(tag, off, thr_=4, sleep=True, ar=2, hp=False):
        A("s_mov_b32 s29, 0")
        A.label(f"L_lw{tag}")
        A(f"""
        ds_read_b32 v6, v{ar} offset:{off}
        s_add_u32 s29, s29, 1
        s_lshr_b32 s31, s29, 21
        s_waitcnt lgkmcnt(0)
        {'s_setprio 3' if hp else ''}
        v_readfirstlane_b32 s28, v6
        {'s_setprio 0' if hp else ''}
        s_max_u32 s28, s28, s31
        s_cmp_ge_u32 s28, {thr_}
        s_cbranch_scc1 L_lg{tag}
        """)
        if sleep: A(f"s_sleep {2 if sleep is True else sleep}")
        A(f"s_branch L_lw{tag}")
        A.label(f"L_lg{tag}")
    A(f"""
    s_cmpk_ge_u32 s2, 256
    s_cbranch_scc1 L_end
    s_load_dwordx8 s[36:43], s[0:1], 0
    s_load_dwordx8 s[44:51], s[0:1], 40
    """)
    if prof: A("s_memtime s[80:81]\ns_memrealtime s[98:99]")
    rp = opt.get("rp", 0)
    NINIT = 22
    sw = opt.get("sw", 0)
    gb = sw
    GWG = SCR + 1024
    IW0 = opt.get("iw0", 152)
    D0 = opt.get("es", 5) - 1; DL = opt.get("dl", 5); hd = opt.get("hd", 0)
    p3m = 2
    eb = opt.get("eb", 0)
    pad = 0
    ES = opt.get("es", 5)
    for l in range(8*ES): assert (l*(256//ES+1))>>8 == l//ES
    A(f"""
    v_readfirstlane_b32 s25, v0
    v_and_b32 v0, 63, v0
    s_and_b32 s20, s2, 7
    s_lshr_b32 s21, s2, 3
    s_lshr_b32 s25, s25, 6                  ; wave
    s_cbranch_scc0 L_t_code
    s_cmp_ge_u32 s25, 4
    s_cbranch_scc1 L_nocpf
    s_lshr_b32 s28, s20, 1
    s_cmp_eq_u32 s25, 3
    s_cbranch_scc1 L_t_x
    s_mul_i32 s28, s28, 5
    s_lshr_b32 s28, s28, 1
    s_lshl1_add_u32 s29, s21, s25
    s_mulk_i32 s29, {30*ES}
    s_add_u32 s28, s28, s29
    s_addk_i32 s28, {-30*ES}
    s_movk_i32 s29, 86
    s_mov_b32 s30, 7
    s_mov_b32 s31, {9*ES-1}
    s_bitcmp1_b32 s20, 0
    s_waitcnt lgkmcnt(0)
    s_cselect_b64 s[32:33], s[44:45], s[38:39]
    s_branch L_t
    L_t_x:
    s_and_b32 s29, s20, 1
    s_lshl2_add_u32 s28, s29, s28
    s_lshl_b32 s28, s28, 5
    s_add_u32 s28, s28, s21
    s_mulk_i32 s28, 80
    s_movk_i32 s29, {256//ES+1}
    s_mov_b32 s30, {10-ES}
    s_mov_b32 s31, {8*ES-1}
    s_waitcnt lgkmcnt(0)
    s_mov_b64 s[32:33], s[36:37]
    s_branch L_t
    L_t_code:
    s_getpc_b64 s[32:33]
    s_and_b32 s28, s21, 7
    s_mulk_i32 s28, 37
    s_mov_b32 s29, 0
    s_mov_b32 s30, 0
    s_mov_b32 s31, 36
    L_t:
    v_min_u32 v1, s31, v0
    v_mul_u32_u24 v2, s29, v1
    v_lshrrev_b32 v2, 8, v2
    v_mad_u32_u24 v1, v2, s30, v1
    v_add_lshl_u32 v2, v1, s28, 7
    v_mov_b32 v3, 0
    v_lshl_add_u64 v[2:3], v[2:3], 0, s[32:33]
    global_load_dword v13, v[2:3], off
    """)
    A.label("L_nocpf")
    A(f"""
    s_load_dwordx4 s[52:55], s[0:1], 72
    s_and_b32 s26, s21, 7
    s_and_b32 s57, s20, 1
    s_lshl3_add_u32 s22, s57, s26
    s_lshr_b32 s27, s21, 3
    s_and_b32 s23, s27, 1
    s_and_b32 s56, s20, 6
    s_lshr_b32 s28, s27, 1
    s_add_u32 s24, s56, s28
    s_and_b32 s35, s25, 3
    s_mov_b32 s6, 2621440
    s_mov_b32 s7, 0x20000
    s_mov_b32 s11, s7
    s_mov_b32 s15, s7
    s_mov_b32 s19, s7
    s_mov_b32 s75, s7
    s_cmp_lt_u32 s25, 4
    s_cbranch_scc1 L_cons
    """)
    na = opt.get("na", 0)
    if na == 0: ordc = f"s_xor_b32 s29, s23, {1 ^ (eb & 1)}\ns_lshl4_add_u32 s28, s29, s28"
    elif na > 0: ordc = f"s_cmp_lt_u32 s28, {na}\ns_cselect_b32 s29, 0, 16\ns_cmp_eq_u32 s23, 0\ns_cselect_b32 s29, s29, {na}\ns_add_u32 s28, s28, s29"
    else: ordc = "s_lshl1_add_u32 s28, s28, s23"
    def duty_calc(dbase, vr):
        return sp(f"""
        s_lshr_b32 s28, s21, 4
        s_lshl3_add_u32 s28, s28, s26           ; workgroup index in XCD group and branch
        {ordc if dbase < 5 else ''}
        """) + (sp(f"""
        s_lshr_b32 s3, s28, 2
        s_and_b32 s28, s28, 3
        s_mul_i32 s28, s28, 3
        s_add_u32 s28, s28, s35                 ; idx 0..11 (three waves per workgroup)
        s_cmp_eq_u32 s35, 3
        s_cselect_b32 s3, 10, s3
        s_add_u32 s3, s3, {dbase}
        """) if opt.get('thin', 0) else sp(f"""
        s_mul_i32 s3, s21, 43
        s_lshr_b32 s3, s3, 8                    ; /6
        s_mul_i32 s29, s3, 6
        s_sub_u32 s28, s21, s29
        s_lshl1_add_u32 s28, s28, s35           ; idx 0..11 (two waves of six workgroups)
        s_cmp_ge_u32 s35, 2
        s_cselect_b32 s3, 10, s3
        s_add_u32 s3, s3, {dbase}
        """) if eb == 2 else sp(f"""
        s_mul_i32 s3, s28, 86
        s_lshr_b32 s3, s3, 8                    ; /3
        s_mul_i32 s29, s3, 3
        s_sub_u32 s28, s28, s29
        s_lshl2_add_u32 s28, s28, s35           ; idx 0..11
        s_add_u32 s3, s3, {dbase}
        """)) + sp(f"""
        s_lshr_b32 s32, s20, 2                  ; p>>1
        s_bitcmp1_b32 s20, 1                    ; p odd
        s_cselect_b32 s29, 6, 9                 ; W slots
        s_cselect_b32 s30, 3, 0
        s_movk_i32 s71, 21846
        s_cselect_b32 s71, 0x8000, s71          ; 65536 / lines per segment
        s_movk_i32 s72, {1280-384}
        s_cselect_b32 s72, {1280-256}, s72
        s_sub_u32 s29, s28, s29                 ; x slot (negative: W slot)
        s_cselect_b32 s33, 0, 1
        s_cbranch_scc1 L_dW{dbase}
        s_cmp_ge_u32 s29, 5
        s_cselect_b32 s3, 10, s3
        s_add_u32 s29, s29, s30
        s_lshl3_add_u32 s29, s32, s29
        s_and_b32 s30, s20, 1
        s_lshl4_add_u32 s29, s30, s29           ; 64-row group
        s_mul_i32 s29, s29, {64*1280}
        s_lshl_b32 s30, s3, 7
        s_add_u32 s70, s29, s30
        v_mul_u32_u24 v{vr}, 1280, v0
        s_branch L_dX{dbase}
        L_dW{dbase}:
        s_mul_i32 s32, s32, 5
        s_add_u32 s30, s30, s32
        s_lshl_b32 s30, s30, 7
        s_mul_i32 s70, s3, 245760
        s_add_u32 s70, s70, s30
        s_lshl_b32 s28, s28, 6
        v_add_u32 v{vr}, s28, v0
        v_mul_u32_u24 v{vr+1}, s71, v{vr}
        v_lshrrev_b32 v{vr+1}, 16, v{vr+1}
        v_mul_u32_u24 v{vr+1}, s72, v{vr+1}
        v_lshl_add_u32 v{vr}, v{vr}, 7, v{vr+1}
        L_dX{dbase}:
        """)
    duty_srd = sp("""
        s_xor_b32 s28, s20, s3
        s_bitcmp1_b32 s28, 0
        s_cselect_b32 s72, s44, s38
        s_cselect_b32 s73, s45, s39
        s_cmp_lg_u32 s33, 0
        s_cselect_b32 s72, s36, s72
        s_cselect_b32 s73, s37, s73
        s_cselect_b32 s74, s6, 2457600
        """)
    xd = opt.get("xd", 3)
    ps = opt.get("ps", 0)
    parc = {0: "s_mov_b32 s58, 0", 1: "s_and_b32 s58, s26, 1", 2: "s_xor_b32 s58, s26, s27\n    s_and_b32 s58, s58, 1", 3: "s_xor_b32 s58, s26, s24\n    s_and_b32 s58, s58, 1"}[ps]
    p3ids = sp("""
    s_lshl2_add_u32 s56, s56, s26
    s_lshl2_add_u32 s57, s57, s27
    s_mov_b32 s14, 0x10000000
    s_mov_b32 s12, s54
    s_mov_b32 s13, s55
    """)
    stamp(6, 9)
    A(f"""
    s_setprio 2
    v_lshrrev_b32 v1, 3, v0
    s_lshl4_add_u32 s28, s22, s35
    s_mul_i32 s28, s28, {8*1280}
    v_mul_u32_u24 v1, 1280, v1
    s_lshl_b32 s29, s35, 2
    v_lshrrev_b32 v3, 4, v0
    v_xor_b32 v3, v3, v0
    v_xor_b32 v3, s29, v3
    v_and_b32 v3, 7, v3
    v_lshlrev_b32 v3, 4, v3
    v_add3_u32 v1, v3, v1, s28              ; x voffset
    v_mul_u32_u24 v6, 26, v0
    v_lshrrev_b32 v6, 8, v6
    v_cmp_le_u32 vcc, 30, v0
    v_mul_u32_u24 v6, {1280-160}, v6
    v_mov_b32 v5, {8*3840-3*1280}
    v_lshl_add_u32 v4, v0, 4, v6
    v_cndmask_b32 v5, 0, v5, vcc
    s_mul_i32 s28, s24, 160
    s_mul_i32 s63, s35, 960
    s_lshl2_add_u32 s28, s63, s28
    v_add3_u32 v2, v4, v5, s28              ; W voffset
    """)
    if pad: A("s_branch L_pad2\nL_pad:\ns_branch L_nocpf\nL_pad2:")
    A(f"""
    s_mov_b32 s10, 2457600
    s_mov_b32 s60, -1
    s_mov_b32 s61, 0x0fffffff
    s_lshl_b32 s62, s35, 10                 ; x m0 base
    s_add_u32 s63, s63, {WOFF}              ; W m0 base
    s_mov_b32 s65, 0
    s_mov_b32 s68, s26
    s_lshl_b32 s59, s27, 12
    s_mov_b32 s31, 0                        ; stage
    {parc}
    """)
    A.label("L_h_nd")
    stamp(7, 9)
    A("""
    s_cmp_eq_u32 s23, 0
    s_waitcnt lgkmcnt(0)
    s_mov_b32 s4, s36
    s_mov_b32 s5, s37
    s_cselect_b32 s8, s38, s44
    s_cselect_b32 s9, s39, s45
    """)
    stamp(1, 9)
    lam = opt.get("lam", 6)
    nW = lam - 4
    def wdma(u):
        A(f"""
        s_mul_i32 s28, s68, 3840
        s_add_u32 m0, s69, s28
        s_and_b32 s29, s68, 1
        s_mul_i32 s29, s29, {4*3840}
        s_lshl3_add_u32 s28, s28, s67
        s_sub_u32 s28, s28, s29
        buffer_load_dwordx4 v2, s[8:11], s28 offen lds
        s_add_u32 s68, s68, 1
        s_and_b32 s68, s68, 7
        """)
    hb = opt.get("hb", 0)
    if hb:
        def xdma():
            A("s_mov_b64 exec, -1\ns_lshl_b32 s66, s31, 7\ns_add_u32 s64, s62, s65")
            for i in range(4):
                A(f"""
                s_add_u32 m0, s64, s59
                s_mul_i32 s28, s59, 10
                s_add_u32 s28, s28, s66
                buffer_load_dwordx4 v1, s[4:7], s28 offen lds
                s_add_u32 s59, s59, 4096
                s_and_b32 s59, s59, 0x3000
                """)
            A("s_mov_b64 exec, s[60:61]")
        def whalf():
            for u in range(4):
                n0 = len(A.lines); wdma(u); A.lines[-1] = "s_and_b32 s68, s68, 3"
        A("s_and_b32 s68, s68, 3")
        A.label("L_h_head")
        xdma()
        A(f"s_cmp_eq_u32 s31, 0\ns_cbranch_scc1 L_h_n1\ns_waitcnt vmcnt(8)\ns_setprio 0\ns_barrier")
        A.label("L_h_n1")
        A("s_mul_i32 s67, s31, 245760\ns_add_u32 s69, s63, s65")
        whalf()
        A(f"s_cmp_eq_u32 s31, 0\ns_cbranch_scc1 L_h_n2\ns_waitcnt vmcnt(8)\ns_barrier")
        A.label("L_h_n2")
        A(f"s_add_u32 s67, s67, {32*3840}\ns_add_u32 s69, s69, {4*3840}")
        whalf()
        A(f"""
        s_add_u32 s31, s31, 1
        s_add_u32 s65, s65, {SLOT}
        s_cmp_eq_u32 s65, {3*SLOT}
        s_cselect_b32 s65, 0, s65
        s_cmp_lt_u32 s31, 10
        s_cbranch_scc1 L_h_head
        s_mov_b64 exec, -1
        s_branch L_h_post
        """)
        sq = 0
    else:
        A.label("L_h_head")
        A("""
        s_xor_b32 s64, s31, s58
        s_lshl_b32 s66, s64, 7
        s_add_u32 s69, s62, s65
        """)
        for i in range(4):
            A(f"""
            s_add_u32 m0, s69, s59
            s_mul_i32 s28, s59, 10
            s_add_u32 s28, s28, s66
            buffer_load_dwordx4 v1, s[4:7], s28 offen lds
            s_add_u32 s59, s59, 4096
            s_and_b32 s59, s59, 0x3000
            """)
        A("s_mul_i32 s67, s64, 245760\ns_add_u32 s69, s63, s65\ns_mov_b64 exec, s[60:61]\ns_cmp_eq_u32 s31, 9\ns_cselect_b32 s68, 0, s68")
        for u in range(nW): wdma(u)
        if prof and sset == 9:
            A("s_cmp_gt_u32 s31, 1\ns_cbranch_scc1 L_x9\ns_cmp_eq_u32 s31, 1\ns_cbranch_scc1 L_y9")
            emit(st(2, 9)); A(f"s_waitcnt vmcnt({lam-1})"); emit(st(3, 9)); A("s_branch L_x9\nL_y9:"); emit(st(4, 9)); A(f"s_waitcnt vmcnt({lam})"); emit(st(5, 9)); A("L_x9:")
        assert gb == 0
        sq = opt.get("sq", 0)
        if sq:
            k0 = opt.get("sqk", 0); d0 = opt.get("sqd", 5)
            A(f"""
            s_sub_u32 s28, s31, {k0}
            s_cmp_ge_u32 s28, {10-d0}
            s_cbranch_scc1 L_h_nq
            s_add_u32 s28, s28, {d0}
            s_lshl2_add_u32 s29, s2, s35
            s_mul_i32 s76, s29, 2560
            s_lshl_b32 s77, s28, 7
            s_add_u32 s76, s76, s77
            s_add_u32 s76, s76, s36
            s_addc_u32 s77, s37, 0
            s_load_dword s3, s[76:77], 0
            s_load_dword s3, s[76:77], 64
            s_load_dword s3, s[76:77], 1280
            s_load_dword s3, s[76:77], 1344
            s_lshr_b32 s30, s29, 1
            s_min_u32 s30, s30, 479
            s_lshl_b32 s30, s30, 9
            s_mul_i32 s28, s28, 245760
            s_add_u32 s28, s28, s30
            s_bitcmp1_b32 s29, 0
            s_cselect_b32 s78, s44, s38
            s_cselect_b32 s79, s45, s39
            s_add_u32 s78, s78, s28
            s_addc_u32 s79, s79, 0
            """)
            for n in range(8): A(f"s_load_dword s3, s[78:79], {64*n}")
            A.label("L_h_nq")
        A(f"""
        s_cmp_eq_u32 s31, 0
        s_cbranch_scc1 L_h_tail
        s_waitcnt vmcnt({lam})
        s_setprio {opt.get("hp1", 0)}
        s_barrier
        """)
        A.label("L_h_tail")
        for u in range(nW, 8): wdma(u)
        A(f"""
        s_mov_b64 exec, -1
        s_add_u32 s31, s31, 1
        s_cmp_eq_u32 s31, 10
        s_cbranch_scc1 L_h_post
        s_add_u32 s65, s65, {SLOT}
        s_cmp_eq_u32 s65, {3*SLOT}
        s_cselect_b32 s65, 0, s65
        s_branch L_h_head
        """)

    A.label("L_cons")
    A(f"""
    s_setprio 1
    s_lshl_b32 s58, s24, 2
    s_add_u32 s58, s58, s25                 ; head
    s_lshl_b32 s28, s23, 5
    s_add_u32 s59, s28, s58
    v_lshrrev_b32 v65, 5, v0                ; h
    v_and_b32 v64, 31, v0                   ; i
    v_lshlrev_b32 v1, 4, v0
    s_mov_b32 s34, {SLOT}
    {parc.replace("s58", "s5")}
    s_waitcnt lgkmcnt(0)
    """)
    A(f"""
    s_cmp_lg_u32 s23, 0
    s_cbranch_scc1 L_nogw
    s_lshl_b32 s30, s25, 11
    s_add_u32 s30, s30, {GWL}
    s_mul_i32 s28, s58, 800
    s_mov_b32 s16, s40
    s_mov_b32 s17, s41
    s_add_u32 s18, s28, 800
    s_mov_b32 m0, s30
    v_add_u32 v57, s28, v1
    buffer_load_dwordx4 v57, s[16:19], 0 offen lds
    buffer_load_dwordx4 v57, s[16:19], 0 offen offset:1024 lds
    s_cmp_lg_u32 s25, 2
    s_cbranch_scc1 L_nogw
    s_mov_b32 s16, s48
    s_mov_b32 s17, s49
    s_mov_b32 m0, {GWG}
    s_mov_b32 s18, 1280
    buffer_load_dwordx4 v1, s[16:19], 0 offen lds
    buffer_load_dwordx4 v1, s[16:19], 0 offen offset:1024 lds
    """)
    A.label("L_nogw")
    emit(p3ids)
    def waddr(base, r=0):
        return sp(f"""
        v_lshrrev_b32 v{12+r}, 4, v0                ; g
        v_bfe_u32 v{10+r}, v0, 2, 2                 ; r
        v_and_b32 v{9+r}, 3, v0                     ; c
        v_lshlrev_b32 v{9+r}, 3, v{9+r}
        v_add_u32 v{9+r}, {base}, v{9+r}
        v_lshrrev_b32 v{11+r}, 5, v0
        v_mul_u32_u24 v{11+r}, 20, v{11+r}
        v_bfe_u32 v{6+r}, v0, 4, 1
        v_lshl_add_u32 v{11+r}, v{6+r}, 2, v{11+r}
        v_add_u32 v{11+r}, v{11+r}, v{10+r}                 ; 20*(g>>1) + 4*(g&1) + r
        v_mov_b32 v{7+r}, 160
        v_mad_u32_u24 v{8+r}, v{11+r}, v{7+r}, v{9+r}
        v_mad_u32_u24 v{11+r}, v{12+r}, 20, v{10+r}
        v_add_u32 v{11+r}, 16, v{11+r}                  ; 20g + 16 + r
        v_mad_u32_u24 v{9+r}, v{11+r}, v{7+r}, v{9+r}
        """)
    def oaddr_v(r=0):
        return sp(f"""
        v_and_b32 v{4+r}, 7, v0
        v_lshlrev_b32 v{5+r}, 7, v0
        v_bfe_u32 v{6+r}, v0, 3, 1                  ; p
        v_lshlrev_b32 v{11+r}, 4, v{4+r}
        v_lshl_add_u32 v{10+r}, v{6+r}, 10, v{11+r}
        v_bfe_u32 v{7+r}, v0, 4, 1
        v_lshl_add_u32 v{10+r}, v{7+r}, 9, v{10+r}
        v_lshrrev_b32 v{7+r}, 5, v0
        v_mul_u32_u24 v{7+r}, 2560, v{7+r}
        v_add_u32 v{10+r}, v{10+r}, v{7+r}
        v_lshrrev_b32 v{7+r}, 4, v0
        v_lshl_add_u32 v{7+r}, v{6+r}, 2, v{7+r}            ; head g + 4p
        v_mul_u32_u24 v{7+r}, 2560, v{7+r}
        v_add_u32 v{11+r}, v{11+r}, v{7+r}
        v_lshl_add_u32 v{4+r}, v{6+r}, 5, v{4+r}
        """)
    HV = SCR + 3072
    A("s_cmp_lg_u32 s25, 1\ns_cbranch_scc1 L_nohv\n; ---- wave 1: lane-dependent addresses the helper waves need after the GEMM")
    emit(waddr(RA, 32) + oaddr_v(32))
    A(f"""
    v_lshlrev_b32 v45, 2, v36
    v_mul_u32_u24 v36, 26, v0
    v_lshrrev_b32 v36, 8, v36
    v_mul_u32_u24 v36, {1280-160}, v36
    v_add_u32 v36, v36, v1
    v_min_u32 v38, 49, v0
    v_mul_u32_u24 v39, 52, v38
    v_lshrrev_b32 v39, 8, v39
    v_mul_u32_u24 v39, {640 if p3m == 2 else 0}, v39
    v_lshl_add_u32 v38, v38, 7, v39
    v_mov_b32 v39, v45
    v_add_u32 v44, {HV}, v1
    ds_write_b128 v44, v[36:39]
    ds_write_b128 v44, v[40:43] offset:1024
    """)
    A.label("L_nohv")
    A(f"""
    s_lshl_b32 s28, s25, 8
    s_or_b32 s33, s28, s2
    s_sub_u32 s33, s33, {IW0 + 3*256}
    s_cmp_ge_u32 s33, {NINIT}
    s_cbranch_scc1 L_noinit
    v_mov_b32 v60, 0
    v_mov_b32 v61, 0
    v_mov_b32 v62, 0
    v_mov_b32 v63, 0
    s_lshl_b32 s28, s33, 13
    s_add_u32 s29, s28, 4096
    buffer_store_dwordx4 v[60:63], v1, s[12:15], s28 offen offset:0 sc1
    buffer_store_dwordx4 v[60:63], v1, s[12:15], s28 offen offset:1024 sc1
    buffer_store_dwordx4 v[60:63], v1, s[12:15], s28 offen offset:2048 sc1
    buffer_store_dwordx4 v[60:63], v1, s[12:15], s28 offen offset:3072 sc1
    buffer_store_dwordx4 v[60:63], v1, s[12:15], s29 offen offset:0 sc1
    buffer_store_dwordx4 v[60:63], v1, s[12:15], s29 offen offset:1024 sc1
    buffer_store_dwordx4 v[60:63], v1, s[12:15], s29 offen offset:2048 sc1
    buffer_store_dwordx4 v[60:63], v1, s[12:15], s29 offen offset:3072 sc1
    """)
    A.label("L_noinit")
    if xd & 2:
        A("s_mov_b32 s31, s33")
        emit([l.replace("v13", "v57") for l in duty_calc(ES, 12)] + duty_srd)
        A("s_mov_b32 s33, s31")
        if ES < 5: pass
        elif eb < 3: A(f"s_cmp_eq_u32 s23, {eb}\ns_cselect_b32 s3, 10, s3")
        else:
            A(f"s_cmp_lt_u32 s25, {6-eb}\ns_cselect_b32 s28, 1, 0\ns_cmp_eq_u32 s28, s23\ns_cselect_b32 s3, s3, 10")
    else:
        A(f"""
        s_and_b32 s28, s2, 63
        s_lshr_b32 s29, s2, 7
        s_lshl_b32 s29, s29, 6
        s_add_u32 s28, s28, s29
        s_lshl2_add_u32 s28, s28, s25
        s_mul_i32 s3, s28, 5699
        s_lshr_b32 s3, s3, 19                   ; slot / 92
        s_mul_i32 s29, s3, 92
        s_sub_u32 s32, s28, s29                 ; idx 0..91
        s_add_u32 s3, s3, 5
        s_cmp_eq_u32 s23, {eb}
        s_cselect_b32 s3, 10, s3
        s_cmp_ge_u32 s3, {opt.get("sqd", 5) if sq else 10}
        s_cselect_b32 s3, 10, s3
        s_cmp_lt_u32 s32, 62
        s_cselect_b32 s28, 32, 62
        s_cselect_b32 s72, s38, s44
        s_cselect_b32 s73, s39, s45
        s_sub_u32 s28, s32, s28
        s_lshl_b32 s28, s28, 13
        s_mul_i32 s29, s3, 245760
        s_add_u32 s28, s28, s29
        s_mul_i32 s29, s32, {64*1280}
        s_lshl_b32 s30, s3, 7
        s_add_u32 s29, s29, s30
        s_cmp_lt_u32 s32, 32
        s_cselect_b32 s70, s29, s28
        s_movk_i32 s29, 1280
        s_cselect_b32 s71, s29, 128
        s_cselect_b32 s74, s6, 2457600
        s_cselect_b32 s72, s36, s72
        s_cselect_b32 s73, s37, s73
        """)
        A("v_mul_u32_u24 v12, s71, v0")
    IT_INIT, IT_DL, IT_DC, IT_W, IT_FL, IT_FC = opt.get("iti", 0), opt.get("itd", 6), opt.get("itd", 6) + 1, opt.get("itw", 5), 7, 8
    A(f"""
    s_mov_b32 s60, -1
    s_mov_b32 s61, 0
    v_bfrev_b32 v71, 1                      ; OOB
    v_cndmask_b32 v2, v71, v1, s[60:61]
    s_mul_i32 s28, s25, {SCRW}
    s_add_u32 s62, s28, {SCR}
    v_mul_u32_u24 v3, 48, v64
    v_add_u32 v3, s62, v3
    v_lshlrev_b32 v66, 3, v65
    v_sub_u32 v4, v3, v66
    v_add_u32 v4, 40, v4
    v_lshl_add_u32 v3, v65, 4, v3
    v_bfe_u32 v69, v0, 2, 2                 ; r
    v_lshl_add_u32 v69, v65, 2, v69
    v_bfe_u32 v70, v0, 4, 1
    v_and_b32 v66, 3, v0
    v_lshl_add_u32 v70, v70, 2, v66         ; sg = 4a + c
    v_min_u32 v66, 5, v70
    v_lshlrev_b32 v66, 3, v66
    v_mul_u32_u24 v5, 48, v69
    v_add3_u32 v5, v5, v66, s62
    v_mov_b32 v15, 0x3f803f80
    v_and_b32 v72, 15, v0
    v_lshlrev_b32 v72, 2, v72
    v_add_u32 v72, {LFLAG}, v72
    v_mov_b32 v74, 0
    ds_write_b32 v72, v74
    v_and_b32 v72, 15, v0                   ; i16
    v_lshrrev_b32 v73, 4, v0                ; g
    v_bfe_u32 v66, v0, 1, 3
    v_xor_b32 v66, v66, v73
    v_lshlrev_b32 v66, 4, v66
    v_lshl_add_u32 v8, v72, 7, v66
    v_xor_b32 v9, 64, v8
    v_bfe_u32 v66, v0, 2, 2                 ; r
    v_lshlrev_b32 v66, 1, v66
    v_bfe_u32 v67, v0, 4, 1
    v_add_u32 v66, v66, v67
    v_lshl_add_u32 v66, v65, 4, v66         ; 16*(g>>1) + 2r + (g&1)
    v_mul_u32_u24 v66, 480, v66
    s_mul_i32 s28, s25, 40
    s_add_u32 s28, s28, {WOFF}
    v_add_u32 v66, s28, v66
    v_and_b32 v68, 3, v0                    ; c
    v_lshl_add_u32 v10, v68, 3, v66
    v_and_b32 v67, 1, v68
    v_lshrrev_b32 v68, 1, v68
    v_add_u32 v68, 1, v68
    v_mul_u32_u24 v68, v68, v67
    v_mul_u32_u24 v68, 160, v68
    v_add3_u32 v11, v68, v66, 32
    s_lshl_b32 s29, s22, 7
    s_add_u32 s28, s59, s29
    s_mul_i32 s28, s28, 2560
    s_add_u32 s76, s28, {OB}
    s_add_u32 s77, s76, {64*2560}
    s_lshl3_add_u32 s28, s23, s24
    s_lshl_b32 s28, s28, 7
    s_lshl_b32 s29, s22, 11
    s_add_u32 s28, s28, s29
    s_add_u32 s78, s28, {F2}
    s_cmp_lt_u32 s33, {NINIT}
    s_cselect_b32 s35, {IT_INIT}, 20
    s_mov_b32 s79, 0
    s_bitset1_b32 s79, s35
    s_sub_u32 s28, s3, {D0+1}
    s_sub_u32 s3, s3, {DL}
    """)
    if opt.get("pre", 0):
        A("s_cbranch_scc0 L_npre\nbuffer_load_dword v13, v12, s[72:75], s70 offen\ns_mov_b32 s3, 21\nL_npre:")
    A(f"""
    s_max_i32 s3, s3, 0
    s_cmp_lt_u32 s28, {9-D0}
    s_cselect_b32 s3, s3, 21
    s_bitset1_b32 s79, s3
    """)
    A("v_mov_b32 v76, 0\nv_mov_b32 v77, 0\nv_mov_b32 v78, 0\nv_mov_b32 v79, 0\ns_nop 1")
    for r in range(8): A(f"{MF32} {v(128+16*r,16)}, v[76:79], v[76:79], 0")
    cs = (20 ** -0.5) * LOG2E
    A(f"""
    s_mov_b32 s27, {F3-F1B}
    s_mov_b32 s8, s52                       ; s[8:11] = d_debug
    s_mov_b32 s9, s53
    s_mov_b32 s10, 256
    s_mov_b32 s31, 0
    s_mov_b32 s32, 0
    s_cmp_eq_u32 s23, 0
    s_cbranch_scc1 L_preA
    """)
    XB = [32, 64]; WB = [96, 112]
    def wr(st_, buf):
        return [f"ds_read_b64_tr_b16 {v(WB[buf]+4*ft+2*jj,2)}, v{10+(ft==3)} offset:{(32*st_+8*jj)*480 + (160*ft if ft<3 else 0)}" for ft in range(4) for jj in range(2)]
    def gr(R, st_, buf):
        if R == "A": A(f"s_mov_b64 exec, s[64:65]\nds_read_b128 {v(WB[buf]+12,4)}, v24 offset:{64*st_}\ns_mov_b64 exec, -1")
    def xr(st_, buf):
        return [f"ds_read_b128 {v(XB[buf]+4*tt,4)}, v{8+st_} offset:{tt*2048}" for tt in range(8)]
    def reads(st_, buf):
        X = xr(st_, buf); return [X[0]] + wr(st_, buf) + X[1:]
    def mf(buf, tt, ft): return f"{MF16} {v(acc(tt,ft),4)}, {v(WB[buf]+4*ft,4)}, {v(XB[buf]+4*tt,4)}, {v(acc(tt,ft),4)}"
    def mfmas(buf): return [mf(buf, tt, ft if tt % 2 == 0 else 3 - ft) for tt in range(8) for ft in range(4)]
    rts = prof and sset == 4
    def mainloop(R, extra):
        stamp(1, 9)
        A("s_waitcnt lgkmcnt(0)\ns_barrier")
        stamp(2, 9)
        if rts: A("s_memrealtime s[82:83]")
        emit(reads(0, 0)); gr(R, 0, 0)
        A.label(f"L_loop{R}")
        for st_ in range(2):
            M = mfmas(st_); Rd = reads(st_ ^ 1, st_ ^ 1)
            A("s_waitcnt lgkmcnt(0)")
            if st_ == 0:
                if rts: A("s_mov_b32 m0, s31\nv_writelane_b32 v2, s82, m0")
                nh = opt.get("hbpos", 14); X1 = xr(1, 1); W1 = wr(1, 1)
                for n in range(32):
                    A(M[n])
                    if hb:
                        if n < 8: A(X1[n])
                        if n == nh: A("s_barrier")
                        if nh <= n < nh + 8: A(W1[n - nh])
                    elif n < 16: A(Rd[n])
                    if n == (nh + 8 if hb else 16): gr(R, 1, 1)
                    if n == (nh + 10 if hb else 18) and R == "A": A("v_add_u32 v24, s4, v24\ns_sub_u32 s4, 256, s4")
                    if n == (10 if hb else 20):
                        A("s_bitcmp1_b32 s79, s31\ns_cbranch_scc1 L_side"); A.label(f"L_back{R}")
            else:
                A(M[0]); A("s_add_u32 s32, s32, 1\ns_cmp_eq_u32 s32, 3")
                A(M[1]); A(f"s_cselect_b32 s33, {-2*SLOT & 0xffffffff}, s34\ns_cselect_b32 s32, 0, s32")
                A(M[2])
                for r in range(8, 12):
                    A(f"v_add_u32 v{r}, s33, v{r}"); A(M[r-5])
                A("s_barrier")
                if rts: A("s_memrealtime s[82:83]")
                for n in range(7, 32):
                    if n - 7 < 16: A(Rd[n-7])
                    if n == 23: gr(R, 0, 0)
                    A(M[n])
                    if n == 29: A("s_add_u32 s31, s31, 1\ns_cmp_lt_u32 s31, 9")
                A(f"s_cbranch_scc1 L_loop{R}")
        M = mfmas(0); X = xr(1, 1); W = wr(1, 1)
        A("s_waitcnt lgkmcnt(0)")
        if rts:
            A(f"""
            v_writelane_b32 v2, s82, 9
            v_writelane_b32 v2, s98, 12
            s_lshl_b32 s28, s2, 2
            s_add_u32 s28, s28, s25
            s_lshl_b32 s28, s28, 8
            s_add_u32 s28, s28, {DBG+0x100000}
            v_lshlrev_b32 v8, 2, v0
            buffer_store_dword v2, v8, s[12:15], s28 offen
            v_bfrev_b32 v8, 1
            v_cndmask_b32 v2, v8, v1, s[60:61]
            """)
        nb = opt.get("b9pos", 16)
        for n in range(32):
            A(M[n])
            if n < 8: A(X[n])
            if n == nb: A("s_barrier                               ; b9b")
            if nb <= n < nb + 8: A(W[n - nb])
            if n == nb + 8: gr(R, 1, 1)
            if opt.get("mvs", 0) and n >= 9 and not nb <= n <= nb + 8 and extra: A(extra.pop(0))
        A("s_waitcnt vmcnt(0) lgkmcnt(0)\ns_barrier")
        stamp(1); stamp(1, 7)

    def conv(t, ft, da, db):
        a = acc(2*t, ft); b = acc(2*t+1, ft)
        return [f"v_cvt_pk_bf16_f32 v{da}, v{a}, v{a+1}", f"v_cvt_pk_bf16_f32 v{db}, v{b}, v{b+1}",
                f"v_cvt_pk_bf16_f32 v{da+1}, v{a+2}, v{a+3}", f"v_cvt_pk_bf16_f32 v{db+1}, v{b+2}, v{b+3}",
                f"v_permlane16_swap_b32 v{da}, v{db}", f"v_permlane16_swap_b32 v{da+1}, v{db+1}"]
    lastk = [mf(1, tt, ft) for tt in range(8) for ft in (3, 2, 1)] + [mf(1, tt, 0) for tt in range(8)]
    K1 = [32 + 4*u for u in range(4)]
    K2d = [48 + 2*u for u in range(4)]
    def vrows(q, l, k2):
        return [f"v_cndmask_b32 v{l}, v{k2}, v15, s[60:61]", f"v_cndmask_b32 v{l+1}, v{k2+1}, v15, s[60:61]",
                f"ds_write_b128 v3, {v(q,4)}", f"ds_write_b64 v4, {v(l,2)}"]
    def signal(r, off): return [f"v_mov_b32 v{r}, {LFLAG}", f"ds_add_u32 v{r}, v13 offset:{off} ; EX1"]
    GLO = f2u(2.0**-40); GHI = f2u(2.0**40)
    def o_fin(O, den, PM, PL, t, pk=True, chk=None, left=None):
        L = []
        if chk is not None:
            L += [f"v_add_u32 v{O[t]+13}, {hex((-GLO) & 0xffffffff)}, v{den}", f"v_max_u32 v{chk}, v{chk}, v{O[t]+13}"]
        L.append(f"v_rcp_f32 v{den}, v{den}")
        for n in range(6):
            if pk: L.append(f"v_pk_mul_f32 {v(O[t]+2*n,2)}, {v(O[t]+2*n,2)}, {v(den,2)} op_sel_hi:[1,0]")
            else: L += [f"v_mul_f32 v{O[t]+2*n}, v{O[t]+2*n}, v{den}", f"v_mul_f32 v{O[t]+2*n+1}, v{O[t]+2*n+1}, v{den}"]
        for n in range(4): L.append(f"v_cvt_pk_bf16_f32 v{PM+4*t+n}, v{O[t]+2*n}, v{O[t]+2*n+1}")
        L.append(f"buffer_store_dwordx4 {v(PM+4*t,4)}, v1, s[12:15], s{76+(t>>1)} offen offset:{(t&1)*1024} sc1")
        for n in range(2): L.append(f"v_cvt_pk_bf16_f32 v{PL+2*t+n}, v{O[t]+8+2*n}, v{O[t]+9+2*n}")
        if left if left is not None else (t & 1):
            L.append(f"buffer_store_dwordx4 {v(PL+4*(t>>1),4)}, v2, s[12:15], s{76+(t>>1)} offen offset:2048 sc1")
        return L

    A(f"""
    v_lshlrev_b32 v66, 2, v65
    v_sub_u32 v66, v64, v66                 ; i - 4h
    v_mov_b32 v67, 0xff800000
    """)
    for vv in range(16):
        kk = 8 * (vv >> 2) + (vv & 3)
        A(f"v_subrev_u32 v{16+vv}, {kk}, v66\nv_and_b32 v{16+vv}, v67, v{16+vv}")
    A(f"""
    v_bfe_u32 v66, v0, 4, 1
    v_mov_b32 v14, {fx(cs)}
    v_cndmask_b32 v14, 0, v14, s[60:61]
    v_cmp_eq_u32 vcc, 1, v66
    s_mov_b32 s64, {fx(cs)}
    s_mov_b32 s65, {fx(cs)}
    v_cndmask_b32_e64 v14, v14, 1.0, vcc
    v_min_u32 v6, 23, v64
    v_mad_u32_u24 v6, v65, 24, v6
    v_cmp_ge_u32 vcc, 23, v64
    v_lshlrev_b32 v6, 4, v6
    s_lshl_b32 s28, s58, 4
    v_cndmask_b32 v7, v71, v6, vcc
    s_add_u32 s28, s28, s22
    s_mul_i32 s66, s28, {KVB_SZ}
    s_add_u32 s66, s66, {KVB}
    s_add_u32 s67, s66, 4096
    s_add_u32 s68, s66, 5120
    s_add_u32 s69, s66, {5120+4*768}
    s_sub_u32 s36, s66, {KVB_SZ}
    s_cmp_ge_u32 s22, 2
    s_cselect_b32 s37, {KVB_SZ}, 0
    s_movk_i32 s39, 128
    s_cselect_b32 s39, 256, s39
    s_lshl_b32 s28, {'s24' if opt.get("bf", 0) else 's58'}, 11
    s_lshl_b32 s29, s22, 7
    s_add_u32 s28, s28, s29
    s_add_u32 s63, s28, {F1B}
    s_sub_u32 s38, s63, 128
    s_sub_u32 s39, s63, s39
    """)
    if gb == 1: A("s_cmp_lg_u32 s25, 2\ns_cbranch_scc1 L_nogw\ns_waitcnt vmcnt(0)\nL_nogw:")
    setB = sp(f"""
    v_bfrev_b32 v12, 1
    v_writelane_b32 v12, s63, 0
    v_bfrev_b32 v8, 1
    v_writelane_b32 v8, s38, 0
    v_writelane_b32 v8, s39, 1
    v_mov_b32 v9, {LFLAG}
    s_nop 0
    v_and_b32 v11, 0x1f0, v1
    v_mov_b32 v10, 0
    s_nop 0
    s_nop 0
    v_mov_b32 v58, 0
    v_mov_b32 v59, 0
    """)
    mainloop("B", setB)
    setB = [l for l in setB if l != "s_nop 0"]
    Q2d = [56, 60, 62, 66]; Q2op = [56, 58, 62, 64]
    VT = [68 + 8*u for u in range(4)]
    VQ = [100, 104]; VL = [108, 110]
    Q1 = [112 + 4*t for t in range(4)]
    S = [176, 160]; O = [192 + 16*t for t in range(4)]; P = 128; MASK = 16
    BCHK = 10
    def segment(pairs, hooks):
        L = []; started = set()
        def qk(n):
            t, u, m = pairs[n]; sb = S[n & 1]; k2 = K2d[u] - (2 if t & 1 else 0)
            return (f"{MF32} {v(sb,16)}, {v(K1[u],4)}, {v(Q1[t],4)}, {v(MASK,16) if m else 0}",
                    f"{MF32} {v(sb,16)}, {v(k2,4)}, {v(Q2op[t],4)}, {v(sb,16)} ; junk {v(k2 if t & 1 else k2+2, 2)}")
        def pv(n, c):
            t, u, m = pairs[n]
            first = (c == 0 and t not in started); started.add(t)
            return f"{MF32} {v(O[t],16)}, {v(VT[u]+4*c,4)}, {v(P+4*c,4)}, {0 if first else v(O[t],16)}"
        def grp(n, g):
            sb = S[n & 1] + 4*g
            for r in range(4): L.append(f"v_exp_f32 v{sb+r}, v{sb+r}")
            L.append(f"v_cvt_pk_bf16_f32 v{P+2*g}, v{sb}, v{sb+1}")
            L.append(f"v_cvt_pk_bf16_f32 v{P+2*g+1}, v{sb+2}, v{sb+3}")
        N = len(pairs)
        first2 = list(qk(0))
        for n in range(N):
            if n + 1 < N:
                a, b = qk(n + 1); L.append(a)
            L += hooks.get((n, 0), [])
            grp(n, 0)
            if n + 1 < N: L.append(b)
            L += hooks.get((n, 1), [])
            grp(n, 1)
            if n > 0: L.append(pv(n - 1, 1))
            L += hooks.get((n, 2), [])
            grp(n, 2)
            L.append(pv(n, 0))
            L += hooks.get((n, 3), [])
            grp(n, 3)
            L += hooks.get((n, 4), [])
        L.append(pv(N - 1, 1))
        return first2, L
    TO = (3, 2, 1, 0)
    blk = [mf(1, tt, ft) for tt in reversed(range(8)) for ft in (3, 2, 1, 0)]
    blk += setB + ["v_mov_b32 v64, 0", "v_mov_b32 v65, 0", "v_mov_b32 v13, 1"]
    def scale(r, pk, src):
        if pk: return [f"v_pk_mul_f32 {v(r,2)}, {v(r,2)}, " + ("v[14:15] op_sel_hi:[1,0]" if src == "v" else "s[64:65]")]
        return [f"v_mul_f32 v{r+e}, {'v14' if src == 'v' else 's64'}, v{r+e}" for e in range(2)]
    npk = opt.get("npkB", 2)
    for k, t in enumerate(TO):
        for tt in (2*t, 2*t+1):
            for n in range(2): blk += scale(acc(tt,3)+2*n, k >= npk, "v")
        blk += conv(t, 3, Q2d[t], K2d[t]) + conv(t, 2, VQ[t&1], VQ[t&1]+2)
        blk += vrows(VQ[t&1], VL[t&1], K2d[t])
        blk += [f"ds_read_b64_tr_b16 {v(VT[t]+4*cc+2*jj,2)}, v5 offset:{(16*cc+8*jj)*48}" for cc in range(2) for jj in range(2)]
        blk += conv(t, 1, K1[t], K1[t]+2)
    def stK1(t): return [f"buffer_store_dwordx4 {v(K1[t],4)}, v1, s[12:15], s66 offen offset:{t*1024} sc1"]
    def stK2(p): return [f"buffer_store_dwordx4 {v(K2d[2*p],4)}, v2, s[12:15], s67 offen offset:{p*512} sc1"]
    def stVT(t): return [f"buffer_store_dwordx4 {v(VT[t]+4*cc,4)}, v7, s[12:15], s{68+(t>>1)} offen offset:{((t&1)*2+cc)*768} sc1" for cc in range(2)]
    stores = []
    for t in TO: stores += stK1(t) + (stK2(t >> 1) if not t & 1 else []) + stVT(t)
    nfs = opt.get("nfs", 10)
    blk += stores[:nfs]
    for t in TO:
        for tt in (2*t, 2*t+1):
            for n in range(2): blk += scale(acc(tt,0)+2*n, True, "s")
        blk += conv(t, 0, Q1[t], Q1[t]+2)
    blk += signal(9, C_SCR)[1:]
    blk.append("!s_waitcnt lgkmcnt(0)")
    pairs = [(t, u, t == u) for u in TO for t in range(u, 4)] + [(t, u, False) for u in TO for t in range(4)] \
          + [(t, u, t == u) for u in TO for t in range(u, -1, -1)]
    def ldK1(u): return [f"buffer_load_dwordx4 {v(K1[u],4)}, v1, s[12:15], s66 offen offset:{u*1024} sc1"]
    def ldK2(p): return [f"buffer_load_dwordx4 {v(K2d[2*p],4)}, v11, s[12:15], s67 offen offset:{p*512} sc1"]
    def ldVT(u): return [f"buffer_load_dwordx4 {v(VT[u]+4*cc,4)}, v6, s[12:15], s{68+(u>>1)} offen offset:{((u&1)*2+cc)*768} sc1" for cc in range(2)]
    hooks = {}
    def hk(q, L): hooks.setdefault((q // 5, q % 5) if isinstance(q, int) else q, []).extend(L)
    sstep = opt.get("sstep", 2)
    spos_ = []
    for k, l in enumerate(stores[nfs:]):
        q = k * sstep
        hk((q // 4, q % 4), [l]); spos_.append(5 * (q // 4) + q % 4)
    assert nfs >= 7
    f1 = opt.get("f1", 0); p1 = opt.get("p1", 13); f2 = opt.get("f2", 17); c1 = opt.get("c1", 26)
    p2 = opt.get("p2", 50); c2 = opt.get("c2", 61)
    assert f1 < p1 < c1 and f1 < f2 < c1 and c1 >= 18
    bf = opt.get("bf", 0); fd = 2 if bf else 0
    def bflag(q, wait, soff, cnt):
        if not bf:
            hk(q, [wait, f"buffer_store_dword v13, v12, s[12:15], {soff} offen sc1"]); return
        hk(q, [wait, f"ds_add_rtn_u32 v102, v100, v13 offset:{cnt} ; EX1"])
        hk(q + fd, ["v_subrev_u32 v102, 3, v102", "v_and_or_b32 v102, v102, v103, v12", f"buffer_store_dword v13, v102, s[12:15], {soff} offen sc1"])
    if bf: hk(0, [f"v_mov_b32 v100, {LFLAG}", "v_bfrev_b32 v103, 1"])
    assert f1 + fd < min(p1, f2) and f2 + fd < c1 and p1 != f2
    lastq = max(spos_ + [-1]); assert lastq <= f2 and not bf
    bflag(f1, f"!s_waitcnt vmcnt({nfs - 7 + sum(q <= f1 for q in spos_)})", "0", C_KV)
    hk(p1, ["buffer_load_dword v9, v8, s[12:15], 0 offen sc1"])
    bflag(f2, f"!s_waitcnt vmcnt({(lastq <= f1) + (lastq <= p1 <= f2)})", "s27", C_KVP)
    setsrc = lambda r: [f"s_add_u32 s67, {r}, 4096", f"s_add_u32 s68, {r}, 5120", f"s_add_u32 s69, {r}, {5120+4*768}"]
    first7 = ldK1(3) + ldK2(1) + ldVT(3) + ldK1(2) + ldVT(2)
    hk(c1, sp("""
        v_cmp_eq_u32 vcc, 0, v9
        s_cmp_eq_u32 s22, 0
        s_cselect_b32 s28, 1, vcc_lo
        s_and_b32 s79, s28, 1
        s_cbranch_scc1 L_B_skip
        s_mov_b32 s66, s36
        """) + setsrc("s36") + first7 + ["L_B_skip:"])
    hk((8, 4), st(3) + ["s_cmp_lg_u32 s79, 0", "s_cbranch_scc1 L_B_wait", "L_B_go:"] + [f"v_xor_b32 v{MASK+vv}, 0xff800000, v{MASK+vv}" for vv in range(16)] + st(4))
    hk((9, 4), ["s_cmp_eq_u32 s22, 0", "s_cbranch_scc1 L_B_x0"])
    hk(p2, ["buffer_load_dword v9, v8, s[12:15], s27 offen sc1"])
    hk(c2, ["v_cmp_eq_u32 vcc, 0, v9", "s_nop 0", "s_and_b32 s28, vcc_lo, 3", "s_cbranch_scc1 L_B_wait2", "L_B_go2:"] + ldK1(1) + ldK2(0))
    hk(c2 + 2, ldVT(1)); hk(c2 + 4, ldK1(0)); hk(c2 + 6, ldVT(0) + [f"s_sub_u32 s{r}, s{r}, s37" for r in range(66, 70)])
    assert c2 + 6 < 72
    hk((opt.get("sigB", 10), 1), signal(100, C_HINT))
    for k, u in enumerate(TO):
        n = 14 + 4*k
        hk((n, 2), ldK1(u) + (ldK2(u >> 1) if not u & 1 else [])); hk((n, 3), ldVT(u))
    hk((25, 4), st(5) + ["s_cmp_eq_u32 s22, 1", "s_cbranch_scc1 L_B_x1"])
    for t, n in ((3, 28), (2, 32), (1, 35)):
        F = o_fin(O, O[t] + 12, 136, 152, t, pk=False, chk=BCHK, left=(t == 2))
        q = (len(F) + 3) // 4
        for k in range(4): hk((n, k), F[k*q:(k+1)*q])
    for k, n in enumerate((9, 10, 13, 17, 21, 25, 30)): hk((n, 0), st(1 + k, 3))
    for k, n in enumerate((0, 1, 2, 4, 5, 6, 8, 9)): hk((n, 0), st(1 + k, 8))
    first2, seg = segment(pairs, hooks)
    sch = schedule(blk + first2, prio=lambda l, i: 100 if "buffer_store" in l else (150 if "32x32" in l else 0), vm_gap=opt.get("gapB", 90), prev=prevl(), verbose=vb)
    if prof and sset == 7:
        tm = dict(schedule.times); pos = [33*k for k in range(1, 8)]
        print("B model t at", [(p, max(t for i, t in tm.items() if i <= p)) for p in pos], "len", len(sch))
        for k, p in reversed(list(enumerate(pos))): sch[p:p] = st(k + 2, 7)
    emit(sch)
    stamp(2)
    x1_pv = f"{MF32} {v(O[3],16)}, {v(VT[0]+4,4)}, {v(P+4,4)}, {v(O[3],16)}"
    seg += st(6) + st(8, 3) + o_fin(O, O[0] + 12, 136, 152, 0, chk=BCHK, left=True)
    emit(schedule(seg, inorder=True, prev=prevl(), verbose=vb))
    A.label("L_B_chk")
    A(f"""
    v_cmp_le_u32 vcc, {hex(GHI-GLO)}, v{BCHK}
    s_nop 0
    s_cbranch_vccz L_P3c
    s_cmp_lg_u32 s79, 9
    s_cbranch_scc1 L_B_slow
    s_branch L_P3c
    """)
    A.label("L_B_wait")
    A("s_cmp_eq_u32 s22, 0\ns_cbranch_scc1 L_B_go")
    poll("B", 8, "s[12:15], 0", 9, 1)
    A("s_mov_b32 s66, s36"); emit(setsrc("s36") + first7)
    A("s_branch L_B_go")
    A.label("L_B_wait2")
    poll("B2", 8, "s[12:15], s27", 9, 2)
    A("s_branch L_B_go2")
    A.label("L_B_x0")
    emit(signal(9, C_HINT))
    A.label("L_B_x1")
    A("s_nop 1"); A(x1_pv)
    A.label("L_B_fin4")
    blk = []
    for t in range(4): blk += o_fin(O, O[t] + 12, 136, 152, t, chk=BCHK)
    emit(schedule(blk, prev=[x1_pv], inorder=True, verbose=vb))
    A("s_branch L_B_chk")

    A.label("L_side")
    A(f"""
    s_waitcnt vmcnt(0)
    s_cmp_lg_u32 s31, s35
    s_cbranch_scc1 L_side4
    s_sub_u32 s28, s2, {IW0}
    s_mul_i32 s28, s28, {opt.get("dst", 12)}
    s_mov_b64 exec, 1
    buffer_store_dword v15, v0, s[8:11], s28 offen sc1
    s_mov_b64 exec, -1
    """)
    A.label("L_side4")
    A("""
    s_cmp_lg_u32 s31, s3
    s_cbranch_scc1 L_side5
    buffer_load_dword v13, v12, s[72:75], s70 offen
    """)
    A.label("L_side5")
    A("s_cmp_lg_u32 s23, 0\ns_cbranch_scc1 L_backB\ns_branch L_backA")

    A.label("L_preA")
    A(f"""
    v_lshrrev_b32 v66, 3, v64               ; q
    v_bfe_u32 v67, v64, 2, 1                ; h'
    v_and_b32 v68, 3, v64                   ; r
    v_lshl_add_u32 v72, v66, 2, v68         ; vv = 4q+r
    v_mad_u32_u24 v73, v67, 10, v72         ; f
    s_lshl_b32 s28, s25, 11
    s_add_u32 s30, s28, {GWL}
    v_lshl_add_u32 v73, v73, 1, s30
    v_mul_u32_u24 v75, 320, v65
    v_cmp_gt_u32 vcc, 10, v72
    s_add_u32 s28, s30, 1024
    v_mov_b32 v74, s28
    v_add_u32 v75, v75, v73
    v_cndmask_b32 v75, v74, v75, vcc
    v_cndmask_b32 v73, v74, v73, vcc
    v_cndmask_b32 v73, v74, v73, s[60:61]
    v_and_b32 v24, 0x30, v0
    s_lshl_b32 s29, s5, 7
    s_add_u32 s29, s29, {GWG}
    v_add_u32 v24, s29, v24
    s_lshl_b32 s4, s5, 8
    s_sub_u32 s4, 128, s4
    v_subrev_u32 v25, 32, v0
    v_cmp_gt_u32 vcc, 16, v25
    v_lshlrev_b32 v25, 2, v25
    s_cmp_eq_u32 s25, 0
    s_cselect_b64 vcc, vcc, 0
    v_cndmask_b32 v25, v71, v25, vcc
    s_mov_b32 s64, 0x0f000f00
    s_mov_b32 s65, 0x0f000f00
    s_lshl3_add_u32 s69, s22, s24
    s_lshl_b32 s69, s69, 6
    s_add_u32 s69, s69, {GATE}
    s_lshl_b32 s27, s24, 2
    v_mov_b32 v74, 99
    v_cmp_eq_u32 vcc, v65, v67
    v_and_b32 v30, 1, v72
    v_lshlrev_b32 v30, 4, v30
    v_cndmask_b32 v72, v74, v72, vcc
    v_mov_b32 v74, 0x3f80
    v_lshlrev_b32 v30, v30, v74
    v_lshrrev_b32 v31, 1, v72
    v_mul_u32_u24 v6, 80, v64
    v_mul_u32_u24 v66, 40, v65
    v_add3_u32 v6, v6, v66, s62
    v_and_b32 v66, 1, v70                   ; h'
    v_mul_u32_u24 v66, 40, v66
    v_mul_u32_u24 v14, 80, v69
    v_add3_u32 v14, v14, v66, s62
    v_lshrrev_b32 v66, 1, v70               ; q
    v_lshl_add_u32 v7, v66, 3, v14
    v_mul_u32_u24 v66, 960, v65
    v_lshl_add_u32 v28, v64, 4, v66
    v_cmp_ge_u32 vcc, 23, v64
    v_lshl_add_u32 v29, v64, 3, v66
    s_lshl_b32 s28, s58, 4
    v_cndmask_b32 v28, v71, v28, vcc
    v_cndmask_b32 v29, v71, v29, vcc
    s_mul_i32 s66, s28, {KVP_SZ}
    s_add_u32 s66, s66, {KVP}
    s_mul_i32 s67, s22, {KVP_SZ}
    s_add_u32 s67, s67, s66
    s_lshl_b32 s28, {'s24' if opt.get("af", 2) else 's58'}, 11
    s_add_u32 s68, s28, {F1A}
    s_lshl_b32 s29, s22, 7
    s_add_u32 s63, s68, s29
    """)
    A("s_waitcnt vmcnt(0)")
    blk = [f"ds_read_u16 v{40+j}, v{75 if j < 8 else 73} offset:{(j if j < 8 else j + 8)*40}" for j in range(12)]
    blk += ["v_mov_b32 v22, 0", "v_mov_b32 v23, 0"]
    for j in range(12):
        blk += [f"v_lshlrev_b32 v{40+j}, 16, v{40+j}", f"v_mul_f32 v{40+j}, {fx(LOG2E)}, v{40+j}"]
        if j & 1: blk.append(f"v_cvt_pk_bf16_f32 v{16+(j>>1)}, v{39+j}, v{40+j}")
    emit(schedule(blk, inorder=True))
    setA = sp("v_bfrev_b32 v12, 1\nv_writelane_b32 v12, s63, 0")
    mainloop("A", setA)
    Q2a = [56 + 2*t for t in range(4)]
    AVQ = [64 + 4*t for t in range(4)]; Q1a = [80 + 4*t for t in range(4)]
    FS = [96, 108]; AVL = [120, 122]
    PT = [160, 176]; KV0, KV1 = 192, 208; EB = [224, 234]; PK = 244
    PQ = [128, 138, 148, 244]
    ACHK = 10
    def premfma(t, op1, op2):
        return [f"{MF32} {v(PT[t&1],16)}, v[16:19], {v(op1,4)}, 0",
                f"{MF32} {v(PT[t&1],16)}, v[20:23], {v(op2,4)}, {v(PT[t&1],16)} ; junk {v(op2+2,2)}"]
    def softmax2(t, dst, slow):
        p = PT[t & 1]; E = EB[t & 1]; c, d = p + 10, p + 12
        L = []
        if slow:
            L += [f"v_max3_f32 v{c}, v{p}, v{p+1}, v{p+2}", f"v_max3_f32 v{d}, -v{p}, -v{p+1}, -v{p+2}"]
            for n in (3, 5, 7):
                L += [f"v_max3_f32 v{c}, v{c}, v{p+n}, v{p+n+1}", f"v_max3_f32 v{d}, v{d}, -v{p+n}, -v{p+n+1}"]
            L += sp(f"""
            v_max_f32 v{c}, v{c}, v{p+9}
            v_max_f32_e64 v{d}, v{d}, -v{p+9}
            v_permlane32_swap_b32 v{c}, v{d}
            v_max_f32 v{c}, v{c}, v{d}
            v_mov_b32 v{d}, v{c}
            v_permlane32_swap_b32 v{c}, v{d}
            """)
            for n in range(10):
                L += [f"v_add_f32 v{E+n}, v{p+n}, v{d}", f"v_sub_f32 v{p+n}, v{p+n}, v{c}",
                      f"v_exp_f32_e64 v{E+n}, -v{E+n}", f"v_exp_f32 v{p+n}, v{p+n}"]
        else:
            for n in range(10): L += [f"v_exp_f32_e64 v{E+n}, -v{p+n}", f"v_exp_f32 v{p+n}, v{p+n}"]
        L += [f"v_pk_add_f32 {v(c,2)}, {v(p,2)}, {v(p+2,2)}", f"v_pk_add_f32 {v(d,2)}, {v(E,2)}, {v(E+2,2)}"]
        for n in (4, 6, 8):
            L += [f"v_pk_add_f32 {v(c,2)}, {v(c,2)}, {v(p+n,2)}", f"v_pk_add_f32 {v(d,2)}, {v(d,2)}, {v(E+n,2)}"]
        L += sp(f"""
        v_add_f32 v{c}, v{c}, v{c+1}
        v_add_f32 v{d}, v{d}, v{d+1}
        v_permlane32_swap_b32 v{c}, v{d}
        v_add_f32 v{c}, v{c}, v{d}
        """)
        if not slow: L.append(f"v_max_u32 v{ACHK}, v{ACHK}, v{c}")
        L += sp(f"""
        v_rcp_f32 v{c}, v{c}
        v_mov_b32 v{d}, v{c}
        v_permlane32_swap_b32 v{c}, v{d}
        """)
        for n in range(10):
            r = p + 2*n if n < 5 else E + 2*n - 10
            L.append(f"v_pk_mul_f32 {v(r,2)}, {v(r,2)}, {v(c if n < 5 else d,2)} op_sel_hi:[1,0]")
            L.append(f"v_cvt_pk_bf16_f32 v{dst+n}, v{r}, v{r+1}")
        return L
    def kside(slow):
        L = []
        for t in range(4):
            L += premfma(t, K1[t], K2d[t])
            L += softmax2(t, PK, slow)
            L += vrows(AVQ[t], AVL[t&1], K2d[t])
            L += [f"ds_read_b64_tr_b16 {v(FS[cc]+8+2*jj,2)}, v5 offset:{(16*cc+8*jj)*48}" for cc in range(2) for jj in range(2)]
            L += [f"ds_write_b64 v6, {v(PK+2*n,2)} offset:{8*n}" for n in range(5)]
            for cc in range(2):
                for jj in range(2):
                    ro = (16*cc + 8*jj) * 80
                    L += [f"ds_read_b64_tr_b16 {v(FS[cc]+2*jj,2)}, v7 offset:{ro}", f"ds_read_b64_tr_b16 {v(FS[cc]+4+2*jj,2)}, v14 offset:{ro+32}"]
            for cc in range(2):
                first = (t == 0 and cc == 0)
                L.append(f"{MF32} {v(KV0,16)}, {v(FS[cc],4)}, {v(FS[cc]+8,4)}, {0 if first else v(KV0,16)}")
                L.append(f"{MF32} {v(KV1,16)}, {v(FS[cc]+4,4)}, {v(FS[cc]+8,4)}, {0 if first else v(KV1,16)}")
        for n in range(8): L.append(f"v_cvt_pk_bf16_f32 v{PK+n}, v{KV0+2*n}, v{KV0+2*n+1}")
        for n in range(2): L.append(f"v_cvt_pk_bf16_f32 v{PK+8+n}, v{KV1+2*n}, v{KV1+2*n+1}")
        L += sp(f"""
        buffer_store_dwordx4 {v(PK,4)}, v28, s[12:15], s67 offen sc1
        buffer_store_dwordx4 {v(PK+4,4)}, v28, s[12:15], s67 offen offset:576 sc1
        buffer_store_dwordx2 {v(PK+8,2)}, v29, s[12:15], s67 offen offset:384 sc1
        """)
        return L
    def qside(slow):
        L = []
        for t in range(4): L += premfma(t, Q1a[t], Q2a[t]) + softmax2(t, PQ[t], slow)
        return L
    AMAX = hex(f2u(2.0**60))
    blk = list(lastk)
    for t in range(4):
        blk += conv(t, 1, K1[t], K1[t]+2) + conv(t, 3, Q2a[t], K2d[t]) + conv(t, 2, AVQ[t], AVQ[t]+2)
    for t in range(4): blk += conv(t, 0, Q1a[t], Q1a[t]+2)
    blk += setA + sp(f"v_mov_b32 v13, 1\nv_mov_b32 v{ACHK}, 0")
    blk += ["v_mov_b32 v26, v224 ; reads v228 v232 v236 v240 v244 v248 v252 IDX", "buffer_store_dword v26, v25, s[12:15], s69 offen sc1"]
    blk += kside(False)
    blk += [f"v_cmp_le_u32 vcc, {AMAX}, v{ACHK}", "!s_cbranch_vccnz L_A_slow ; reads vcc v9 v[12:13] v[32:95]"] + signal(9, C_SCR)
    af = opt.get("af", 2)
    aflag = [f"!s_waitcnt vmcnt({3 if opt.get('na1') else 0}) ; reads v8"] + ([f"v_mov_b32 v8, {LFLAG}", f"ds_add_rtn_u32 v11, v8, v13 offset:{C_KV} ; EX1", "v_subrev_u32 v11, 3, v11",
             "v_and_b32 v11, 0x80000000, v11", "v_or_b32 v12, v12, v11"] if af else []) + ["buffer_store_dword v13, v12, s[12:15], 0 offen sc1"]
    blk += aflag
    if opt.get("lateb", 0):
        k = blk.index("!s_waitcnt vmcnt(0)"); blk.insert(k - 3, blk.pop(k))
    blk += qside(False)
    sch = schedule(blk, prio=lambda l, i: 6000 if "buffer_store" in l else (3000 if "ds_add" in l else 0), vm_lat=(1 if opt.get('na1') else opt.get("ackA", 800)), prev=prevl(), verbose=vb, ds_lat=opt.get("dslA", 90), ds_slack=opt.get("dssA", 24), ds_mul=opt.get("dsmA", 10) / 10)
    if prof and sset == 0:
        k = max(i for i, l in enumerate(sch) if "buffer_store_dwordx2" in l)
        sch = sch[:k+1] + st(2) + st(3) + sch[k+1:]
    if prof and sset == 7:
        tm = dict(schedule.times); pos = [80*k for k in range(1, 8)]
        print("model t at", [(p, max(t for i, t in tm.items() if i <= p)) for p in pos], "len", len(sch), "store at", max(i for i, l in enumerate(sch) if "buffer_store_dwordx2" in l))
        for k, p in reversed(list(enumerate(pos))): sch[p:p] = st(k + 2, 7)
    k = [i for i, l in enumerate(sch) if "IDX" in l][0]
    sch[k:k+1] = ["s_set_gpr_idx_on s27, gpr_idx(SRC0)", sch[k].replace(" IDX", ""), "s_set_gpr_idx_off"]
    emit(sch)
    A(f"v_cmp_le_u32 vcc, {AMAX}, v{ACHK}\ns_nop 0\ns_cbranch_vccnz L_A_slowq")
    A.label("L_A_pre")
    stamp(4)
    A(f"""
    v_mov_b32 v16, v30
    v_mov_b32 v17, v31
    v_mov_b32 v158, 0
    v_mov_b32 v159, 0
    v_mov_b32 v254, 0
    v_mov_b32 v255, 0
    v_and_b32 v8, 31, v0
    v_lshrrev_b32 v10, 5, v0
    v_mul_u32_u24 v10, 960, v10
    {'v_mov_b32 v11, v28' if opt.get("gm", 0) else 'v_min_u32 v11, 23, v8'}
    {'' if opt.get("gm", 0) else 'v_lshl_add_u32 v11, v11, 4, v10'}
    v_lshl_add_u32 v9, v8, 4, v10
    v_cmp_ge_u32 vcc, 20, v8
    v_add_u32 v10, 48, v9
    v_lshrrev_b32 v8, 1, v8
    v_cndmask_b32 v9, v10, v9, vcc
    v_add_u32 v8, 21, v8
    v_and_b32 v10, 32, v0
    v_add_lshl_u32 v8, v8, v10, 2
    v_and_b32 v10, 1, v0
    v_cmp_eq_u32 s[70:71], 1, v10
    s_mov_b32 s67, s66
    s_add_u32 s69, s66, {16*KVP_SZ}
    s_and_b32 s28, s22, {opt.get('grot', 7)}
    s_mul_i32 s28, s28, {2*KVP_SZ}
    s_add_u32 s66, s66, s28
    """)
    for n in range(8):
        A(f"v_cmp_eq_u32 vcc, {n}, v17\ns_nop 1\nv_cndmask_b32 v{24+n}, 0, v16, vcc")
    A("v_lshlrev_b32 v33, 7, v0")
    if af == 2:
        A(f"v_mov_b32 v34, {LFLAG}\ns_cmp_lg_u32 s25, 0\ns_cbranch_scc1 L_a_np")
        poll("A", 33, "s[12:15], s68", 32, 16)
        A(f"v_mov_b32 v32, 4\nds_write_b32 v34, v32 offset:{C_KVP}\ns_branch L_lgap")
        A.label("L_a_np")
        lwait("ap", C_KVP, 4, opt.get("gsl", 1), 34)
    else: poll("A", 33, "s[12:15], s68", 32, 16)
    stamp(5); stamp(1, 3)
    PB = [32 + 8*n for n in range(12)] + [160 + 8*n for n in range(4)]; SUM = 224
    blk = []
    for n in range(16):
        blk += [f"buffer_load_dwordx4 {v(PB[n],4)}, v9, s[12:15], s66 offen offset:{(n&1)*KVP_SZ} sc1",
                f"buffer_load_dwordx4 {v(PB[n]+4,4)}, v11, s[12:15], s66 offen offset:{(n&1)*KVP_SZ+576} sc1"]
        if n & 1: blk += [f"s_add_u32 s66, s66, {2*KVP_SZ}", "s_cmp_eq_u32 s66, s69", "s_cselect_b32 s66, s67, s66"]
    GL = opt.get("glook", 6)
    ld = [blk[i:i+7] for i in range(0, 56, 7)]
    blk = []
    for p_ in range(GL // 2): blk += ld[p_]
    for n in range(16):
        blk.append(f"{MF32} {v(SUM,16)}, v[24:27], {v(PB[n],4)}, {0 if n==0 else v(SUM,16)}")
        blk.append(f"{MF32} {v(SUM,16)}, v[28:31], {v(PB[n]+4,4)}, {v(SUM,16)}")
        if n & 1 and (n + GL) // 2 < 8:
            blk += ld[(n + GL) // 2]
            if (n + GL) // 2 == 7: blk += signal(12, C_HINT)
        if n in (0, 4, 8, 13, 15): blk += st(3 + (0, 4, 8, 13, 15).index(n), 3)
    for n in range(8): blk.append(f"v_cvt_pk_bf16_f32 v{16+n}, v{SUM+2*n}, v{SUM+2*n+1}")
    if prof and sset == 3: blk.append("!s_waitcnt lgkmcnt(0)")
    blk += sp("""
    ds_bpermute_b32 v24, v8, v16
    ds_bpermute_b32 v25, v8, v17
    ds_bpermute_b32 v28, v8, v18
    ds_bpermute_b32 v29, v8, v19
    v_mov_b32 v26, 0
    v_mov_b32 v27, 0
    """)
    OA = [160 + 16*t for t in range(4)]
    for t in range(2):
        for c in range(2):
            blk.append(f"{MF32} {v(OA[t],16)}, {v(16+4*c,4)}, {v(PQ[t]+4*c,4)}, {0 if c==0 else v(OA[t],16)}")
    blk += ["v_cndmask_b32 v24, v24, v28, s[70:71]", "v_cndmask_b32 v25, v25, v29, s[70:71]"]
    emit(schedule(blk, inorder=True, prev=prevl(), verbose=vb))
    stamp(6); stamp(8, 3)
    blk = []
    for t in range(4):
        for c in range(0 if t >= 2 else 2, 3):
            blk.append(f"{MF32} {v(OA[t],16)}, {v(16+4*c,4)}, {v(PQ[t]+4*c,4)}, {0 if c==0 else v(OA[t],16)}")
    for t in range(4):
        blk += [f"v_add_f32 v{OA[t]+12}, {fx(1e-6)}, v{OA[t]+8}", f"v_add_f32 v{OA[t]+14}, {fx(1e-6)}, v{OA[t]+8}",
                f"v_permlane32_swap_b32 v{OA[t]+14}, v{OA[t]+12}"]
        blk += o_fin(OA, OA[t] + 12, 32, 48, t, pk=(t >= 2))
    emit(schedule(blk, vm_gap=60, prev=prevl(), verbose=vb))

    def lpost_l(off, reg=3): return ["s_mov_b64 exec, 1", f"ds_add_u32 v2, v{reg} offset:{off}", "s_mov_b64 exec, -1"]
    def lpost(off, reg=3): emit(lpost_l(off, reg))
    def oaddr_s(br):
        L = sp(f"""
        s_and_b32 s73, s25, 3                   ; tq
        s_mul_i32 s74, s56, {64*2560}
        s_add_u32 s74, s74, {OB + br*32*2560}
        s_lshl_b32 s28, s73, 7
        s_add_u32 s74, s74, s28
        s_mul_i32 s30, s73, 6144
        """)
        for G in range(4):
            L += sp(f"s_add_u32 s28, s35, {G}\ns_and_b32 s28, s28, 3\ns_mul_i32 s28, s28, {8*2560}\ns_add_u32 s{64+G}, s28, s74")
        L += sp(f"s_lshr_b32 s28, s56, 1\ns_lshl_b32 s28, s28, 11\ns_add_u32 s74, s28, {F2 + br*1024}")
        L.append("v_lshl_add_u32 v12, v0, 4, s30")
        return L
    def wreads(n, dst):
        if rp: return [f"ds_read_b128 {v(dst+4*ct,4)}, v8 offset:{(n % 10)*5120 + 1024*ct}" for ct in range(5)]
        s5 = n % 5; goff = HG * ((n // 5) & 1); L = []
        for ct in range(5):
            for jj in range(2):
                if s5 < 4: L.append(f"ds_read_b64_tr_b16 {v(dst+4*ct+2*jj,2)}, v8 offset:{goff + (40*s5+8*jj)*160 + 32*ct}")
                else: L.append(f"ds_read_b64_tr_b16 {v(dst+4*ct+2*jj,2)}, v9 offset:{goff + 80*jj*160 + 32*ct}")
        return L
    def p3main(NP, NR, per, bump, extra, hookf, wstart=1, w3start=0):
        OF = 16; PACC = OF + 4*NR; WF = PACC + 20
        assert WF + 20*NP <= 256
        def oload(n):
            G, s5 = divmod(n, 5); o = OF + 4*(n % NR)
            if s5 < 4:
                return [f"buffer_load_dwordx4 {v(o,4)}, v10, s[12:15], s{64+G} offen sc1",
                        f"s_add_u32 s{64+G}, s{64+G}, 5120" if s5 < 3 else f"s_sub_u32 s{64+G}, s{64+G}, {3*5120}"]
            return [f"buffer_load_dwordx4 {v(o,4)}, v11, s[12:15], s{64+G} offen offset:2048 sc1"]
        LOOK = min(NR - 1, opt.get('lookc', 9))
        blk = []
        for n in range(LOOK): blk += oload(n)
        blk += extra
        RW = []
        for m in range(NP, 20):
            if m == 10 and bump: RW += [f"v_add_u32 v8, {2*HG}, v8"] + ([] if rp else [f"v_add_u32 v9, {2*HG}, v9"])
            RW += [(m, l) for l in wreads(m, WF + 20*(m % NP))]
        for n in range(20):
            o = OF + 4*(n % NR)
            if n % 5 == 4:
                blk += sp(f"""
                v_mov_b32 v6, v{o+2}
                v_mov_b32 v7, v{o+3}
                v_mov_b32_dpp v{o+2}, v{o} row_ror:8 row_mask:0xf bank_mask:0x3
                v_mov_b32_dpp v{o+3}, v{o+1} row_ror:8 row_mask:0xf bank_mask:0x3
                v_mov_b32_dpp v{o}, v6 row_ror:8 row_mask:0xf bank_mask:0xc
                v_mov_b32_dpp v{o+1}, v7 row_ror:8 row_mask:0xf bank_mask:0xc
                """)
            buf = WF + 20*(n % NP)
            R = []
            while RW and n >= wstart and len(R) < per and (isinstance(RW[0], str) or (RW[0][0] - NP < n and (RW[0][0] < 15 or n >= w3start))):
                x = RW.pop(0); R.append(x if isinstance(x, str) else x[1])
            assert not RW or isinstance(RW[0], str) or RW[0][0] > n + 1
            for ct in range(5):
                blk.append(f"{MF16} {v(PACC+4*ct,4)}, {v(buf+4*ct,4)}, {v(o,4)}, {0 if n==0 else v(PACC+4*ct,4)}")
                if ct == 0 and n + LOOK < 20: blk += oload(n + LOOK)
                k = (len(R) + (4 - ct)) // (5 - ct)
                blk += R[:k]; R = R[k:]
            blk += hookf(n, not RW)
        return blk, PACC, WF
    def p3main2(per, bump, extra, hookf, wstart=1):
        OF = 16; PACC = 36; WF = 56
        def ob(n): return OF + 4*(n % 10) if n % 10 < 5 else WF + 4*(n % 10 - 5)
        def wb_(m): return WF + 20*m if m < 10 else WF + 20*(1 + (m - 10) % 9)
        def wfree(m): return m - 9 if m < 19 else 10
        def oload(n):
            G, s5 = divmod(n, 5); o = ob(n)
            if s5 < 4:
                return [f"buffer_load_dwordx4 {v(o,4)}, v10, s[12:15], s{64+G} offen sc1",
                        f"s_add_u32 s{64+G}, s{64+G}, 5120" if s5 < 3 else f"s_sub_u32 s{64+G}, s{64+G}, {3*5120}"]
            return [f"buffer_load_dwordx4 {v(o,4)}, v11, s[12:15], s{64+G} offen offset:2048 sc1"]
        blk = []
        for n in range(5): blk += oload(n)
        nxt = 5
        blk += extra + ([f"v_add_u32 v8, {bump & 0xffffffff}, v8", f"v_add_u32 v9, {bump & 0xffffffff}, v9"] if bump else [])
        RW = [(m, l) for m in range(10, 20) for l in wreads(m, wb_(m))]
        LK = opt.get("look", 9)
        for n in range(20):
            o = ob(n)
            if n % 5 == 4:
                blk += sp(f"""
                v_mov_b32 v6, v{o+2}
                v_mov_b32 v7, v{o+3}
                v_mov_b32_dpp v{o+2}, v{o} row_ror:8 row_mask:0xf bank_mask:0x3
                v_mov_b32_dpp v{o+3}, v{o+1} row_ror:8 row_mask:0xf bank_mask:0x3
                v_mov_b32_dpp v{o}, v6 row_ror:8 row_mask:0xf bank_mask:0xc
                v_mov_b32_dpp v{o+1}, v7 row_ror:8 row_mask:0xf bank_mask:0xc
                """)
            R = []
            while RW and len(R) < per and wfree(RW[0][0]) < n and n >= wstart: R.append(RW.pop(0)[1])
            assert not RW or RW[0][0] > n + 1
            for ct in range(5):
                blk.append(f"{MF16} {v(PACC+4*ct,4)}, {v(wb_(n)+4*ct,4)}, {v(o,4)}, {0 if n==0 else v(PACC+4*ct,4)}")
                if nxt < 20 and nxt <= n + LK and (nxt - 5 <= ct if n == 0 else ct in (0, 2)) and (nxt < 10 or nxt - 10 < n):
                    blk += oload(nxt); nxt += 1
                k = (len(R) + (4 - ct)) // (5 - ct)
                blk += R[:k]; R = R[k:]
            blk += hookf(n, not RW)
        assert nxt == 20
        return blk, PACC, WF
    def dump(base):
        A("s_waitcnt vmcnt(0)\ns_memtime s[76:77]\ns_memrealtime s[100:101]\ns_waitcnt lgkmcnt(0)")
        for k in range(1, 9): A(f"s_sub_u32 s{80+2*k}, s{80+2*k}, s80\nv_mov_b32 v{16+k}, s{80+2*k}")
        A(f"""
        s_sub_u32 s76, s76, s80
        v_mov_b32 v16, s76
        v_mov_b32 v25, s98
        v_mov_b32 v26, s100
        v_mov_b32 v27, 0
        s_lshl_b32 s28, s2, 2
        s_and_b32 s29, s25, 3
        s_add_u32 s28, s28, s29
        s_lshl_b32 s28, s28, 6
        s_add_u32 s28, s28, {base}
        v_mov_b32 v2, 0
        buffer_store_dwordx4 v[16:19], v2, s[12:15], s28 offen
        buffer_store_dwordx4 v[20:23], v2, s[12:15], s28 offen offset:16
        buffer_store_dwordx4 v[24:27], v2, s[12:15], s28 offen offset:32
        """)
    rotc = {4: "s_add_u32 s35, s57, s56", 2: "s_lshl_b32 s35, s57, 1", 1: "s_mov_b32 s35, 0"}[opt.get("p3r", 2)]
    def otouch(br, bit):
        if not opt.get("ot", 0) >> bit & 1: return None
        A(f"""
        v_mul_u32_u24 v18, 2560, v0
        s_mul_i32 s33, s56, {64*2560}
        s_and_b32 s28, s57, 3
        s_mul_i32 s28, s28, 640
        s_add_u32 s33, s33, s28
        s_add_u32 s33, s33, {OB + br*32*2560}
        """)
        return [f"buffer_load_dword v19, v18, s[12:15], s33 offen offset:{128*k} sc1" for k in range(5)]
    wf = opt.get("wf", 1)
    NF = 8; assert wf and af
    def oflag(tag):
        if wf:
            A(f"""
            s_mov_b64 exec, 1
            ds_add_rtn_u32 v6, v2, v13 offset:{C_GATE}
            s_mov_b64 exec, -1
            s_waitcnt lgkmcnt(0)
            v_readfirstlane_b32 s28, v6
            s_cmp_lg_u32 s28, 3
            s_cbranch_scc1 L_of{tag}
            """)
        A("buffer_store_dword v13, v14, s[12:15], 0 offen sc1")
        A.label(f"L_of{tag}")
    A.label("L_P3c")
    if opt.get("na2"):
        A(f"v_mov_b32 v2, {LFLAG}\nv_bfrev_b32 v14, 1\nv_writelane_b32 v14, s78, 0")
        oflag("z")
        oflag = lambda tag: None
    NPc = opt.get("npc", 9); NRc = (256 - 16 - 20 - 20*NPc) // 4
    A(f"""
    v_mov_b32 v2, {LFLAG}
    ds_read_b32 v4, v2 offset:{C_B01}
    v_bfrev_b32 v14, 1
    v_writelane_b32 v14, s78, 0
    {rotc}
    """)
    emit(waddr(RB))
    A(f"""
    s_waitcnt lgkmcnt(0)
    v_readfirstlane_b32 s79, v4
    s_cmp_ge_u32 s79, 4
    s_cbranch_scc1 L_lgp
    """)
    A("s_waitcnt vmcnt(0)"); oflag("a")
    lwait("p", C_B01)
    A("s_waitcnt vmcnt(6)")
    WFc = 16 + 4*NRc + 20
    nearly = opt.get("nearly", 6)
    for n in range(nearly): emit(wreads(n, WFc + 20*n))
    fp_ = opt.get("fp", 1)
    if fp_: emit(oaddr_v() + oaddr_s(1 - sw))
    A(f"""
    s_waitcnt vmcnt(0)
    s_cmp_lt_u32 s79, 4
    s_cbranch_scc1 L_P3_nf
    """)
    oflag("b")
    A.label("L_P3_nf")
    stamp(7)
    if fp_ == 2:
        A(f"s_cmp_lg_u32 s25, 0\ns_cbranch_scc1 L_c_n0\ns_mov_b64 exec, 0xff\nbuffer_load_dword v16, v5, s[12:15], s74 offen sc1\ns_mov_b64 exec, -1\nL_c_n0:")
    for n in range(nearly, NPc): emit(wreads(n, WFc + 20*n))
    if not fp_: emit(oaddr_v() + oaddr_s(1 - sw))
    cp = opt.get("cp", 0)
    if not cp: lwait("q", C_B23)
    FIN = RA + HG + 0
    n0 = len(A.lines)
    A(f"""
    s_lshl_b32 s28, s56, 6
    s_mul_i32 s30, s73, 3072
    s_add_u32 s30, s30, {FIN}
    v_and_b32 v2, 15, v0
    v_mul_u32_u24 v2, 160, v2
    v_lshrrev_b32 v3, 4, v0
    v_lshlrev_b32 v3, 3, v3
    v_add3_u32 v2, v2, v3, s30
    v_add_u32 v3, s30, v1
    s_lshl_b32 s29, s73, 3
    s_add_u32 s28, s28, s29
    s_mul_i32 s28, s28, 1280
    s_mul_i32 s29, s57, 160
    s_add_u32 s72, s28, s29
    """)
    for rd, dst in enumerate((1, 4, 15)):
        A(f"""
        v_add_u32 v6, {64*rd}, v0
        v_mul_u32_u24 v7, 205, v6
        v_lshrrev_b32 v7, 11, v7                ; row = j/10
        v_lshlrev_b32 v6, 4, v6
        v_mul_u32_u24 v{dst}, {1280-160}, v7
        v_lshrrev_b32 v7, 3, v7
        v_mul_u32_u24 v7, {24*1280}, v7
        v_add3_u32 v{dst}, v{dst}, v6, v7
        """)
    A(f"""
    v_bfrev_b32 v6, 1
    v_cndmask_b32 v15, v6, v15, s[60:61]
    s_mov_b32 s16, s50
    s_mov_b32 s17, s51
    s_mov_b32 s18, 2621440
    """)
    finaddr = []
    if fp_:
        finaddr = [l for l in A.lines[n0:] if not l.startswith(";")]; del A.lines[n0:]
    if cp:
        A(f"""
        v_mov_b32 v7, {LFLAG}
        s_cmp_gt_u32 s25, 1
        s_cbranch_scc1 L_c_np
        s_lshl_b32 s28, s25, 10
        s_xor_b32 s74, s74, s28
        s_lshl_b32 s28, s25, 2
        v_subrev_u32 v17, s28, v7
        """)
        poll("P", 5, "s[12:15], s74", 16, NF)
        A(f"v_mov_b32 v16, 4\nds_write_b32 v17, v16 offset:{C_POLC}")
        A.label("L_c_np")
        lwait("q", C_B23, 4, 1, 7)
        lwait("cp", C_POLC, 4, opt.get("gsl", 1), 7)
    else:
        A(f"v_mov_b32 v7, {LFLAG}\ns_cmp_lg_u32 s25, 0\ns_cbranch_scc1 L_c_np")
        if fp_ == 2: A("s_waitcnt vmcnt(0)\nv_cmp_eq_u32 vcc, 0, v16\ns_nop 0\ns_and_b32 s28, vcc_lo, 0xff\ns_cbranch_scc0 L_goP")
        poll("P", 5, "s[12:15], s74", 16, NF)
        A(f"v_mov_b32 v16, 4\nds_write_b32 v7, v16 offset:{C_POLC}\ns_branch L_lgcp")
        A.label("L_c_np")
        lwait("cp", C_POLC, 4, opt.get("gsl", 1), 7)
    stamp(8); stamp(1, 1)
    A(f"s_setprio {opt.get('cprio', 0)}")
    XA = 16; nbar = opt.get("nbar", 17)
    def chook(n, done):
        L = st(3, 1) if n == 0 else (st(4, 1) if n == 10 else [])
        if n == nbar:
            L += st(5, 1) + ["s_barrier"] + st(6, 1)
            if prof and sset == 1: L.append("!s_waitcnt lgkmcnt(0)")
            L += ["ds_read_b32 v8, v12 offset:5120"] + [f"ds_read_b128 {v(XA+4*ct,4)}, v12 offset:{1024*ct}" for ct in range(5)]
        return L
    blk, PACC, WF = p3main(NPc, NRc, opt.get("rper", 8), True, finaddr, chook)
    for ct in range(5):
        for n in range(2): blk.append(f"v_pk_fma_f32 {v(XA+4*ct+2*n,2)}, {v(PACC+4*ct+2*n,2)}, v[8:9], {v(XA+4*ct+2*n,2)} op_sel_hi:[1,0,1] ; junk v9")
        for n in range(2): blk.append(f"v_cvt_pk_bf16_f32 v{100+2*ct+n}, v{XA+4*ct+2*n}, v{XA+4*ct+2*n+1}")
        blk.append(f"ds_write_b64 v2, {v(100+2*ct,2)} offset:{32*ct}")
    blk += [f"ds_read_b128 {v(112+4*rd,4)}, v3 offset:{1024*rd}" for rd in range(3)]
    blk += [f"buffer_store_dwordx4 {v(112+4*rd,4)}, v{dst}, s[16:19], s72 offen nt" for rd, dst in enumerate((1, 4, 15))]
    emit(schedule(blk, inorder=True, prev=prevl(), verbose=vb))
    stamp(7, 1); stamp(8, 1)
    if prof: dump(DBG)
    A("s_endpgm")
    A.label("L_h_post")
    A(f"""
    v_lshlrev_b32 v29, 4, v0
    v_add_u32 v29, {SCR + 3072}, v29
    ds_read_b128 v[4:7], v29
    ds_read_b128 v[8:11], v29 offset:1024
    """)
    emit(p3ids)
    A(f"""
    s_cmp_lt_u32 s35, 2
    s_cselect_b32 s16, s42, s46
    s_cselect_b32 s17, s43, s47
    s_mov_b32 s18, 819200
    s_lshl_b32 s28, s21, 1
    s_and_b32 s29, s35, 1
    s_add_u32 s28, s28, s29
    """)
    if p3m == 2: A("s_mul_i32 s28, s28, 12800\ns_and_b32 s29, s20, 1\ns_mul_i32 s29, s29, 640\ns_add_u32 s28, s28, s29")
    else: A("s_mul_i32 s28, s28, 6400\ns_add_u32 s69, s28, 409600\ns_mov_b32 s4, s16\ns_mov_b32 s5, s17\ns_mov_b32 s6, s18")
    A(f"""
    s_mov_b32 s72, s52
    s_mov_b32 s73, s53
    s_movk_i32 s74, 256
    v_min_u32 v14, {NINIT-1}, v0
    v_mul_u32_u24 v14, {opt.get("dst", 12)}, v14
    buffer_load_dword v15, v14, s[72:75], 0 offen sc1
    s_waitcnt lgkmcnt(0)
    buffer_load_dword v13, v6, s[16:19], s28 offen
    """)
    A("v_mov_b32 v1, v7")
    if p3m == 1: A("v_mov_b32 v30, v6")
    wt = 2
    A(f"s_setprio 0\ns_waitcnt vmcnt({4+wt})\ns_barrier")
    A(f"""
    s_waitcnt vmcnt({wt})
    s_barrier                               ; b9b
    s_mul_i32 s62, s35, 6400
    """)
    if rp:
        A(f"s_mul_i32 s63, s57, {8*HG}\ns_add_u32 s63, s63, s62\ns_add_u32 s63, s63, {W3F}")
    else:
        A(f"""
        s_mov_b32 s16, s42                      ; s[16:19] = WoA
        s_mov_b32 s17, s43
        s_mov_b32 s18, 819200
        s_mov_b32 s8, s46                       ; s[8:11] = WoB
        s_mov_b32 s9, s47
        s_mov_b32 s10, 819200
        s_mul_i32 s28, s57, 160
        s_mul_i32 s63, s35, {40*1280}
        s_add_u32 s63, s63, s28
        s_mov_b32 s61, 0x0003ffff               ; 50 lanes
        """)
    A(f"""
    {rotc}
    v_mov_b32 v2, {LFLAG}
    v_mov_b32 v3, 1
    s_waitcnt vmcnt(1)
    v_cmp_eq_u32 vcc, 0, v15
    s_nop 0
    s_cbranch_vccz L_goI
    """)
    poll("I", 14, "s[72:75], 0", 15, 64)
    A("s_barrier")
    stamp(1)
    thr = opt.get("thr", 6)
    wa = opt.get("w3a", 5); wb = opt.get("w3b", 0)
    wa0 = opt.get("w3a0", 5)
    NI = 8
    WFh = 56
    hp = opt.get("lwp", 1)
    def wo(k, br, G, dst, role, hooks=None):
        nh = (wa, wb)[role]
        th = (opt.get("thrA", 3), opt.get("thrB", 2))[role] if k < nh else thr
        tg = f"{k}{'ab'[role]}"
        if k == nh: lwait(f"h{tg}", C_HINT, 4, opt.get("hsl", 4), hp=hp)
        A(f"""
        s_add_u32 s28, s35, {G}
        s_and_b32 s28, s28, 3
        s_mul_i32 s75, s28, {160*1280}
        s_add_u32 s75, s75, s63
        s_add_u32 m0, s62, {dst}
        s_mov_b64 exec, s[60:61]
        """)
        stamp(k + 1, 6)
        for n in range(NI):
            if n == 4: A("s_add_u32 m0, m0, 3200")
            if n: A(f"s_add_u32 s75, s75, {5600 if n != 4 else 5600 + 3200}")
            A(f"buffer_load_dwordx4 v4, {'s[8:11]' if br ^ sw else 's[16:19]'}, s75 offen offset:{(n&3)*800} lds")
            if hooks and (8*k + n) in hooks:
                A("s_mov_b64 exec, -1")
                for h in hooks[8*k + n]: h()
                A("s_mov_b64 exec, s[60:61]")
            if role == 1 and k < nh and opt.get("adp", 0):
                A(f"""
                s_cbranch_vccnz L_ad{tg}{n}
                ds_read_b32 v6, v2 offset:{C_HINT}
                s_waitcnt vmcnt({th-1}) lgkmcnt(0)
                s_setprio 3
                v_cmp_le_u32 vcc, 4, v6
                s_setprio 0
                L_ad{tg}{n}:
                s_waitcnt vmcnt({thr-1})
                """)
            elif th: A(f"s_waitcnt vmcnt({th-1})")
        A("s_mov_b64 exec, -1")
    emit(oaddr_s(sw))
    A("s_mov_b64 vcc, 0")
    A("s_cmp_eq_u32 s23, 0\ns_cbranch_scc1 L_h_sA")
    for role in (1, 0):
        r_ = "ab"[role]
        if role == 0: A.label("L_h_sA")
        pre = sum([wreads(n, WFh + 20*n) for n in range(10)], [])
        il = opt.get("il" + r_, role)
        H = {}
        def at(i, f): H.setdefault(i, []).append(f)
        def landed(last, cnt):
            at(last + 6, lambda: (A("s_waitcnt vmcnt(6)"), lpost(cnt)))
        landed(15, C_A01); landed(47, C_B23)
        eh = opt.get("eh", 0); ep = opt.get("ep", 59)
        if eh & 1: at(ep, lambda: A(f"s_cmp_lg_u32 s25, 4\ns_cbranch_scc1 L_ep{r_}\ns_mov_b64 exec, 0xff\nbuffer_load_dword v16, v5, s[12:15], s74 offen sc1\nL_ep{r_}:"))
        if il:
            landed(31, C_B01)
            c0 = opt.get("ilc", 26)
            at(c0, lambda: (lwait("c0" + r_, C_SCR, hp=hp), lwait("c1" + r_, C_A01, hp=hp)))
            nf = -(-100 // (43 - c0))
            for i in range(c0, 43): at(i, lambda: emit([pre.pop(0) for _ in range(min(nf, len(pre)))]))
            at(43, lambda: (A("s_waitcnt lgkmcnt(0)"), lpost(C_PRE)))
        wo(0, 0, 0, RA, role, H); wo(1, 0, 1, RA + HG, role, H); wo(2, 1, 0, RB, role, H); wo(3, 1, 1, RB + HG, role, H)
        if not il:
            lwait("c0" + r_, C_SCR, hp=hp); lwait("c1" + r_, C_A01, hp=hp)
            emit(pre); A("s_waitcnt vmcnt(0) lgkmcnt(0)"); lpost(C_PRE); lpost(C_B01)
        stamp(2)
        wo(4, 1, 2, RB + 2*HG, role, H); wo(5, 1, 3, RB + 3*HG, role, H)
        stamp(3)
        lwait("c2" + r_, C_PRE, hp=hp)
        wo(6, 0, 2, RA, role, H)
        if not eh & 4: wo(7, 0, 3, RA + HG, role, H)
        if role == 1: A("s_branch L_h_sJ")
    A.label("L_h_sJ")
    if not eh & 2: A("s_waitcnt vmcnt(0)"); lpost(C_A23)
    stamp(4)
    A("s_cmp_lg_u32 s25, 4\ns_cbranch_scc1 L_h_np")
    if eh & 1: A(f"s_waitcnt vmcnt({63-ep})\nv_cmp_eq_u32 vcc, 0, v16\ns_nop 0\ns_and_b32 s28, vcc_lo, 0xff\ns_cbranch_scc0 L_goH")
    poll("H", 5, "s[12:15], s74", 16, NF)
    A("v_mov_b32 v14, 4"); lpost(C_POLL, 14)
    if eh & 2: A("s_branch L_lgc5")
    A.label("L_h_np")
    if not eh & 2: lwait("c3", C_A23)
    lwait("c5", C_POLL, 4, opt.get("gsl", 1) and True)
    stamp(5)
    A(f"s_setprio {opt.get('hprio3', 1)}")
    ws_ = opt.get("wst", 4) if eh & 2 else 1
    g7 = []
    if eh & 4:
        assert not eh & 3
        for n in range(8):
            L = sp(f"s_add_u32 s28, s35, 3\ns_and_b32 s28, s28, 3\ns_mul_i32 s75, s28, {160*1280}\ns_add_u32 s75, s75, s63\ns_add_u32 m0, s62, {RA+HG}") if n == 0 else []
            if n == 4: L.append("s_add_u32 m0, m0, 3200")
            if n: L.append(f"s_add_u32 s75, s75, {5600 if n != 4 else 5600 + 3200}")
            g7.append(L + ["s_mov_b64 exec, s[60:61]", f"buffer_load_dwordx4 v4, {'s[8:11]' if sw else 's[16:19]'}, s75 offen offset:{(n&3)*800} lds", "s_mov_b64 exec, -1"])
    def hhook(n, done):
        if eh & 4:
            if n < 3: return g7[2*n+2] + g7[2*n+3]
            if n == 7: return lpost_l(C_G7)
            if n == 11: return [f"ds_read_b32 v13, v2 offset:{C_G7}", "v_readfirstlane_b32 s28, v13", "s_cmp_lt_u32 s28, 4", "s_cbranch_scc1 L_h_w3", "L_h_w3b:"]
        if eh & 2:
            if n == 0: return lpost_l(C_A23)
            if n == ws_ - 2: return [f"ds_read_b32 v13, v2 offset:{C_A23}"]
            if n == ws_ - 1: return ["v_readfirstlane_b32 s28, v13", "s_cmp_lt_u32 s28, 4", "s_cbranch_scc1 L_h_w3", "L_h_w3b:"]
        if n == 8: return [f"v_mul_f32 v14, {fx(LOG2E if sw else -LOG2E)}, v14", "v_exp_f32 v14, v14"]
        if n == 9: return ["v_add_f32 v14, 1.0, v14", "v_rcp_f32 v14, v14"]
        if n == 10: return ["v_sub_f32 v15, 1.0, v14"]
        if n == 14: return lpost_l(C_XCH)
        if n == 17: return [f"ds_read_b32 v13, v2 offset:{C_XCH}"]
        return []
    gl = sp(f"""
        s_lshl_b32 s28, s56, 8
        s_lshl_b32 s29, s73, 5
        s_add_u32 s28, s28, s29
        s_add_u32 s28, s28, {GATE}
        buffer_load_dword v14, v1, s[12:15], s28 offen sc1
        """)
    if eh & 4: gl += g7[0] + g7[1]
    if opt.get("look", 0): blk, PACC, WF = p3main2(opt.get("rperh", 8), 0, gl, hhook, ws_)
    else: blk, PACC, WF = p3main(10, 5, 10 if eh & 4 else opt.get("rperh", 8), False, gl, hhook, ws_, 12 if eh & 4 else 0)
    assert WF == WFh
    blk += ["v_readfirstlane_b32 s28, v13", "s_cmp_ge_u32 s28, 4", "s_cbranch_scc1 L_lgc4"]
    emit(schedule(blk, inorder=True, prev=prevl(), verbose=vb))
    lwait("c4", C_XCH, 4, False)
    stamp(6)
    A("ds_write_b32 v12, v15 offset:5120\ns_nop 3")
    for ct in range(5):
        for n in range(2): A(f"v_pk_mul_f32 {v(PACC+4*ct+2*n,2)}, {v(PACC+4*ct+2*n,2)}, v[14:15] op_sel_hi:[1,0]")
        A(f"ds_write_b128 v12, {v(PACC+4*ct,4)} offset:{1024*ct}")
    A("s_waitcnt lgkmcnt(0)")
    stamp(7)
    A("s_barrier")
    stamp(8)
    if prof: dump(DBG + 0x10000)
    A("s_endpgm")
    if eh & 4:
        A.label("L_h_w3")
        lwait("c3x", C_G7, 4, False)
        A("s_branch L_h_w3b")
    if eh & 2:
        A.label("L_h_w3")
        lwait("c3", C_A23, 4, False)
        A("s_branch L_h_w3b")
    A.label("L_A_slow")
    A("s_waitcnt vmcnt(0) lgkmcnt(0)\ns_nop 15")
    emit(schedule(kside(True) + signal(9, C_SCR) + aflag, inorder=True))
    A.label("L_A_slowq")
    A("s_nop 15")
    emit(schedule(qside(True), inorder=True))
    A("s_branch L_A_pre")
    A.label("L_B_slow")
    CM = 16; CT = 136; SK1 = 32; SK2 = 38; SV = 44; MX = 8
    A(f"""
    s_waitcnt vmcnt(0)
    s_mov_b32 s79, 9
    v_and_b32 v8, 31, v0
    v_lshrrev_b32 v9, 5, v0
    v_lshlrev_b32 v9, 2, v9
    v_sub_u32 v8, v8, v9                    ; i - 4h
    v_mov_b32 v9, 0xff800000
    v_mov_b32 v36, 0
    v_mov_b32 v37, 0
    v_mov_b32 v40, 0
    v_mov_b32 v41, 0
    s_lshl_b32 s28, s58, 4
    s_mul_i32 s66, s28, {KVB_SZ}
    s_add_u32 s66, s66, {KVB}
    """)
    for vv in range(16):
        kk = 8 * (vv >> 2) + (vv & 3)
        A(f"v_cmp_gt_i32 vcc, {kk}, v8\ns_nop 1\nv_cndmask_b32 v{CM+vv}, 0, v9, vcc")
    for t in range(4):
        A(f"""
        s_lshl_b32 s67, s22, 2
        s_add_u32 s67, s67, {t}
        s_sub_u32 s68, s67, 8
        s_mov_b32 s69, 0                        ; pass
        v_mov_b32 v{MX}, 0xff800000
        """)
        for r in range(16): A(f"v_mov_b32 v{O[t]+r}, 0")
        A.label(f"L_sp{t}")
        A("s_max_i32 s70, s68, 0")
        A.label(f"L_sk{t}")
        A(f"""
        s_lshr_b32 s28, s70, 2
        s_mul_i32 s28, s28, {KVB_SZ}
        s_add_u32 s28, s28, s66
        s_and_b32 s29, s70, 3
        s_lshl_b32 s30, s29, 10
        s_add_u32 s30, s30, s28
        buffer_load_dwordx4 {v(SK1,4)}, v1, s[12:15], s30 offen sc1
        s_lshr_b32 s30, s29, 1
        s_lshl_b32 s30, s30, 9
        s_and_b32 s31, s29, 1
        s_lshl_b32 s31, s31, 3
        s_add_u32 s30, s30, s31
        s_add_u32 s30, s30, s28
        s_add_u32 s30, s30, 4096
        buffer_load_dwordx2 {v(SK2,2)}, v11, s[12:15], s30 offen sc1
        s_mul_i32 s30, s29, 1536
        s_add_u32 s30, s30, s28
        s_add_u32 s30, s30, 5120
        buffer_load_dwordx4 {v(SV,4)}, v6, s[12:15], s30 offen sc1
        buffer_load_dwordx4 {v(SV+4,4)}, v6, s[12:15], s30 offen offset:768 sc1
        s_cmp_eq_u32 s70, s68
        s_cselect_b32 s28, 0xff800000, 0
        s_cselect_b32 s29, -1, 0
        s_cmp_eq_u32 s70, s67
        s_cselect_b32 s29, -1, s29
        """)
        for r in range(16): A(f"v_xor_b32 v{CT+r}, s28, v{CM+r}\nv_and_b32 v{CT+r}, s29, v{CT+r}")
        k2 = SK2 - (2 if t & 1 else 0)
        A(f"""
        s_waitcnt vmcnt(0)
        s_nop 1
        {MF32} {v(S[0],16)}, {v(SK1,4)}, {v(Q1[t],4)}, {v(CT,16)}
        {MF32} {v(S[0],16)}, {v(k2,4)}, {v(Q2op[t],4)}, {v(S[0],16)}
        s_nop 15
        s_cmp_lg_u32 s69, 0
        s_cbranch_scc1 L_s2{t}
        """)
        for r in range(8): A(f"v_max3_f32 v{MX}, v{MX}, v{S[0]+2*r}, v{S[0]+2*r+1}")
        A(f"s_branch L_sn{t}")
        A.label(f"L_s2{t}")
        for r in range(16): A(f"v_sub_f32 v{S[0]+r}, v{S[0]+r}, v{MX}")
        for r in range(16): A(f"v_exp_f32 v{S[0]+r}, v{S[0]+r}")
        for r in range(8): A(f"v_cvt_pk_bf16_f32 v{P+r}, v{S[0]+2*r}, v{S[0]+2*r+1}")
        A(f"""
        s_nop 1
        {MF32} {v(O[t],16)}, {v(SV,4)}, {v(P,4)}, {v(O[t],16)}
        {MF32} {v(O[t],16)}, {v(SV+4,4)}, {v(P+4,4)}, {v(O[t],16)}
        s_nop 15
        """)
        A.label(f"L_sn{t}")
        A(f"""
        s_add_u32 s70, s70, 1
        s_cmp_le_u32 s70, s67
        s_cbranch_scc1 L_sk{t}
        v_mov_b32 v9, v{MX}
        s_nop 1
        v_permlane32_swap_b32 v{MX}, v9
        v_max_f32 v{MX}, v{MX}, v9
        s_add_u32 s69, s69, 1
        s_cmp_lt_u32 s69, 2
        s_cbranch_scc1 L_sp{t}
        """)
    A("s_branch L_B_fin4")
    A.label("L_end")
    A(".if (L_end - L_t_code) < 38016 || (L_nocpf - %s) > 256\n.error \"code prefetch range / first fetch window\"\n.endif" % NAME)
    return A

DOC = """;
;  P2B sliding-window attention: K / V^T fragments published for the two following blocks, 36 32x32 tiles per wave.
"""
def wrap(A, lds=163840, header=""):
    hdr = header + f"; @launch grid=(256,1,1) block=(512,1,1) lds={lds}\n" + (DOC if header else "")
    return hdr + f""".amdgcn_target "amdgcn-amd-amdhsa--gfx950"
.text
.globl {NAME}
.p2align 8
.type {NAME},@function
{NAME}:
{A.text()}    s_endpgm
.section .rodata,"a"
.p2align 6
.amdhsa_kernel {NAME}
  .amdhsa_next_free_vgpr 256
  .amdhsa_next_free_sgpr 102
  .amdhsa_accum_offset 256
  .amdhsa_group_segment_fixed_size 0
  .amdhsa_kernarg_size 88
  .amdhsa_user_sgpr_count 2
  .amdhsa_user_sgpr_kernarg_segment_ptr 1
  .amdhsa_system_sgpr_workgroup_id_x 1
.end_amdhsa_kernel
"""
if __name__ == "__main__":
    HEADER = open("gated_mix__linear_kernel_hedgehog__sliding_block__prompt.s.ref").read().split("; Override")[0]
    opt = dict(DEFAULTS)
    out = "k19.s"
    for a in sys.argv[1:]:
        if "=" in a:
            k, x = a.split("="); opt[k] = int(x)
        else: out = a
    A = gen(opt)
    for p in check_hazards(A.lines): print("HAZARD", p)
    open(out, "w").write(wrap(A, header=HEADER))
```

```python
import gen19 as G, sys
d = "cdna_kernels/"
pts = [None, "L_nocpf:", "L_cons:", "L_noinit:", "PREBAR", "L_loopB:"]
for tag, pt in zip("abcdef", pts):
    A = G.gen(dict(G.DEFAULTS)); L = A.lines
    i = L.index("s_cbranch_scc1 L_end"); L.insert(i+1, "s_memrealtime s[80:81]")
    if pt is None: L.insert(i+2, "s_memrealtime s[82:83]")
    elif pt == "PREBAR":
        j = L.index("L_loopB:"); k = max(q for q in range(j) if L[q] == "s_barrier"); L.insert(k-1, "s_memrealtime s[82:83]")
    elif pt == "L_loopB:": L.insert(L.index(pt), "s_memrealtime s[82:83]")
    else: L.insert(L.index(pt)+1, "s_memrealtime s[82:83]")
    st = [i for i, l in enumerate(L) if "s[16:19], s72 offen" in l][-1]
    spin = ["s_lshl2_add_u32 s28, s2, s25", "s_cmpk_lg_u32 s28, 403", "s_cbranch_scc1 L_sd",
            "s_sub_u32 s28, s82, s80", "s_min_u32 s28, s28, 1000", "s_mul_i32 s28, s28, 10", "s_add_u32 s28, s28, 6000",
            "L_s2:", "s_memrealtime s[76:77]", "s_waitcnt lgkmcnt(0)", "s_sub_u32 s29, s76, s80", "s_cmp_lt_u32 s29, s28", "s_cbranch_scc1 L_s2", "L_sd:"]
    L[st+1:st+1] = spin
    open(d + f"p_{tag}.s", "w").write(G.wrap(A))
```

```python
import sys, importlib, probe9
d = "cdna_kernels/"
for i, a in enumerate(sys.argv[1:]):
    g, _, o = a.partition(":"); G = importlib.import_module(g); opt = dict(G.DEFAULTS, sset=99)
    for kv in o.split(","):
        if kv: k, x = kv.split("="); opt[k] = int(x)
    probe9.build(G, opt, (0, 9), d + f"p_{'abcdef'[i]}.s", None)
```
